```python
import torch

def _softmax(x, axis=-1):
    return torch.softmax(x, dim=axis)
def _gelu(x):
    return torch.nn.functional.gelu(x, approximate="tanh")
def _silu(x):
    return torch.nn.functional.silu(x)
def _sigmoid(x):
    return torch.sigmoid(x)
def _layernorm(x, axis=-1, eps=1e-5):
    m = x.mean(dim=axis, keepdim=True)
    v = x.var(dim=axis, keepdim=True, unbiased=False)
    return (x - m) / torch.sqrt(v + eps)
def _scatter_add(tgt, idx, src, axis=0):
    return tgt.clone().index_add_(axis, idx, src)
def _segment_sum(src, seg, n):
    out = torch.zeros((n,) + src.shape[1:], dtype=src.dtype)
    return out.index_add_(0, seg, src)
def _pad(x, pw):
    flat = tuple(v for pair in reversed(pw) for v in pair)
    return torch.nn.functional.pad(x, flat)

kernel_name = 'standalone__sequential_behavior_din__recsys'

def setup_inputs():

    _w = (lambda a: (lambda t: t.to(torch.bfloat16) if t.is_floating_point() else t)(torch.as_tensor(a)))
    B, L, D = 16384, 50, 16
    H = D
    return {
        "target": _w((lambda *s: torch.randn(*s, dtype=torch.bfloat16) * 1.6)(B, D)),
        "hist": _w((lambda *s: torch.randn(*s, dtype=torch.bfloat16) * 1.6)(B, L, D)),
        "mask": _w((lambda lo, hi, *s: torch.randint(lo, hi, s))(0, 2, B, L).to(float)),
        "w1": _w((lambda *s: torch.randn(*s, dtype=torch.bfloat16) * 1.6)(4 * D, H) * (4 * D) ** -0.5),
        "b1": _w((lambda *s: torch.randn(*s, dtype=torch.bfloat16) * 1.6)(H) * 0.1),
        "w2": _w((lambda *s: torch.randn(*s, dtype=torch.bfloat16) * 0.05)(H, 1) * H ** -0.5),
        "b2": _w((lambda *s: torch.randn(*s, dtype=torch.bfloat16) * 0.05)(1) * 0.1),
    }

def reference(target, hist, mask, w1, b1, w2, b2):
    L = hist.shape[1]
    tgt = (lambda x, n, axis: torch.repeat_interleave(x, n, dim=axis))(target[:, None, :], L, axis=1)
    feat = torch.concatenate([hist, tgt, hist - tgt, hist * tgt], axis=-1)
    h = _sigmoid(feat @ w1 + b1)
    scores = (h @ w2 + b2)[..., 0] * mask
    return torch.einsum('bl,bld->bd', scores, hist)
```

```python
import re

class Ins:
    def __init__(self, text, kind, vr=(), vw=(), sr=(), sw=(), passes=0, srcc=(), note=None):
        self.text = text
        self.kind = kind
        self.vr = set(vr)
        self.vw = set(vw)
        self.sr = set(sr)
        self.sw = set(sw)
        self.passes = passes
        self.srcc = set(srcc)
        self.note = note

def R(base, n=1):
    if n == 1:
        return f"v{base}"
    return f"v[{base}:{base+n-1}]"

def S(base, n=1):
    if n == 1:
        return f"s{base}"
    return f"s[{base}:{base+n-1}]"

def rng(base, n):
    return list(range(base, base + n))

class Prog:
    def __init__(self):
        self.ins = []

    def add(self, ins):
        self.ins.append(ins)
        return ins

    def raw(self, text, kind='other', **kw):
        return self.add(Ins(text, kind, **kw))

    def label(self, name):
        return self.add(Ins(f"{name}:", 'label'))

    def comment(self, text):
        return self.add(Ins(f"; {text}", 'comment'))

    def salu(self, text, sr=(), sw=()):
        return self.add(Ins(text, 'salu', sr=sr, sw=sw))

    def wait(self, vm=None, lgkm=None):
        t = "s_waitcnt"
        if vm is not None:
            t += f" vmcnt({vm})"
        if lgkm is not None:
            t += f" lgkmcnt({lgkm})"
        return self.add(Ins(t, 'wait'))

    def valu(self, text, vr=(), vw=(), sr=(), sw=()):
        return self.add(Ins(text, 'valu', vr=vr, vw=vw, sr=sr, sw=sw))

    def trans(self, op, d, s):
        return self.add(Ins(f"{op} v{d}, v{s}", 'trans', vr=[s], vw=[d]))

    def mfma(self, op, d, a, na, b, nb, c, passes=4, nd=4):
        if c is None:
            ct = "0"
            cr = []
        else:
            ct = R(c, nd)
            cr = rng(c, nd)
        t = f"{op} {R(d, nd)}, {R(a, na)}, {R(b, nb)}, {ct}"
        return self.add(Ins(t, 'mfma', vr=rng(a, na) + rng(b, nb) + cr, vw=rng(d, nd), passes=passes, srcc=cr))

    def ds(self, text, vr=(), vw=()):
        return self.add(Ins(text, 'ds', vr=vr, vw=vw))

    def vmem(self, text, vr=(), vw=(), sr=()):
        return self.add(Ins(text, 'vmem', vr=vr, vw=vw, sr=sr))

    def fix_hazards(self):
        out = []
        hist = []
        slot = 0
        XDL_D_TO_VALU = {2: 5, 4: 8, 8: 12, 16: 20}
        XDL_D_TO_AB = {2: 5, 4: 8, 8: 12, 16: 20}
        XDL_D_TO_C_OVERLAP = {2: 4, 4: 6, 8: 10, 16: 18}
        XDL_C_WAR = {2: 1, 4: 3, 8: 7, 16: 15}
        SG_D_TO_VALU = {2: 4, 4: 6, 8: 10, 16: 18}
        for ins in self.ins:
            if ins.kind in ('label', 'comment'):
                out.append(ins)
                if ins.kind == 'label':
                    pass
                continue
            need = 0
            for (ps, p) in hist[-40:]:
                dist = slot - ps - 1
                req = 0
                isvalu = ins.kind in ('valu', 'trans')
                if p.kind in ('valu', 'trans'):
                    if ins.kind == 'mfma' and (p.vw & ins.vr):
                        req = max(req, 2)
                    if p.kind == 'trans' and ins.kind == 'valu' and (p.vw & ins.vr):
                        req = max(req, 1)
                    if p.kind == 'trans' and ins.kind == 'mfma' and (p.vw & ins.vr):
                        req = max(req, 2)
                    if p.sw and isvalu and (p.sw & ins.sr):
                        req = max(req, 2)
                    if p.sw and ins.kind == 'vmem' and (p.sw & ins.sr):
                        req = max(req, 5)
                    if p.sw and ins.kind == 'salu' and (p.sw & ins.sr):
                        req = max(req, 1)
                    if isvalu and ('readfirstlane' in ins.text or 'readlane' in ins.text) and (p.vw & ins.vr):
                        req = max(req, 1)
                    if isvalu and ('row_' in ins.text or 'quad_perm' in ins.text or 'permlane' in ins.text) and (p.vw & ins.vr):
                        req = max(req, 2)
                    if 'exec' in p.sw and ins.kind == 'mfma':
                        req = max(req, 4)
                if p.kind == 'mfma':
                    sg = '_f32 ' in p.text.split(',')[0] and 'x4_f32' in p.text
                    tab_valu = SG_D_TO_VALU if sg else XDL_D_TO_VALU
                    if (isvalu or ins.kind in ('ds', 'vmem')) and (p.vw & (ins.vr | ins.vw)):
                        req = max(req, tab_valu[p.passes])
                    if ins.kind == 'mfma':
                        ab = ins.vr - ins.srcc
                        if p.vw & ab:
                            req = max(req, tab_valu[p.passes])
                        if p.vw & ins.srcc:
                            if p.vw == ins.srcc and p.passes == ins.passes:
                                req = max(req, 0 if p.passes >= 4 else 2)
                            else:
                                req = max(req, XDL_D_TO_C_OVERLAP[p.passes])
                        if (p.vw & ins.vw) and not (p.vw == ins.srcc):
                            req = max(req, XDL_D_TO_C_OVERLAP[p.passes])
                    if isvalu and (p.srcc & ins.vw):
                        req = max(req, XDL_C_WAR[p.passes])
                if p.kind == 'salu' and 'm0' in p.sw and ins.kind == 'vmem' and 'm0' in ins.sr:
                    req = max(req, 1)
                if p.kind == 'vmem' and ('store_dwordx4' in p.text or 'store_dwordx3' in p.text) and isvalu and (p.vr & ins.vw):
                    req = max(req, 2)
                if req - dist > need:
                    need = req - dist
            while need > 0:
                n = min(need, 16)
                nop = Ins(f"s_nop {n-1}", 'nop')
                out.append(nop)
                slot += n
                need -= n
            out.append(ins)
            hist.append((slot, ins))
            slot += 1
        self.ins = out

    def text(self):
        lines = []
        for i in self.ins:
            if i.kind == 'label':
                lines.append(i.text)
            else:
                lines.append("    " + i.text)
        return "\n".join(lines)
```

```python
import sys
from asmlib import *

NAME = "standalone__sequential_behavior_din__recsys"
B, L, D = 16384, 50, 16

def gen(NB=4, WPB=4, use_lo=True):
    NWG = B // (NB * WPB)
    WAVE_LDS = NB * 2176
    LDS = WAVE_LDS * WPB
    p = Prog()
    NL2E = 0xBFB8AA3B

    sH, sM, sT, sO, sW1, sB1, sW2, sB2 = 20, 24, 28, 32, 36, 40, 44, 48
    sWave, sB0, sHoff, sMoff, sLds, sTmp, sToff = 52, 53, 54, 55, 56, 57, 58
    sMask = 60
    sNL = 62

    vLane, vN, vG = 1, 2, 3
    vRow, vTr, vMk, vOut = 4, 5, 6, 7
    D3 = 8
    def Mh(b): return 12 + 12 * b
    def Ml(b): return 12 + 12 * b + 2
    def Cb(b): return 12 + 12 * b + 4
    def W2B(b): return 12 + 12 * b + 8
    base = 12 + 12 * NB
    def A2(q): return base + 4 * q
    def Rr(q): return base + 16 + 2 * q
    def X(q): return base + 24 + 2 * q
    def Sr(q): return base + 32 + 2 * q
    def D1(q): return base + 40 + 4 * q
    sp = base + 56
    vH0, vH1, vMo, vW, vG8, vB2o, vTmp = sp, sp + 1, sp + 2, sp + 3, sp + 4, sp + 5, sp + 6
    nvgpr = sp + 8
    wa, wb, wc, wd = base + 16, base + 20, base + 24, base + 28
    P, Q = base + 32, base + 36
    Wch, Wcl = base + 40, base + 42
    B1, B1raw = base + 44, base + 48
    W2base, b2raw = base + 50, base + 54
    Traw = base
    assert 2 * NB <= 8
    tt, mm = base + 8, base + 12
    uu, ll = wa, wb

    p.salu(f"s_cmp_ge_u32 s2, {NWG}")
    p.raw("s_cbranch_scc1 L_end", 'branch')
    p.raw("s_load_dwordx16 s[4:19], s[0:1], 0", 'smem')
    p.valu(f"v_and_b32 v{vLane}, 63, v0", vr=[0], vw=[vLane])
    p.valu(f"v_and_b32 v{vN}, 15, v0", vr=[0], vw=[vN])
    p.valu(f"v_bfe_u32 v{vG}, v0, 4, 2", vr=[0], vw=[vG])
    p.valu(f"v_lshrrev_b32 v{vTmp}, 6, v0", vr=[0], vw=[vTmp])
    p.valu(f"v_lshlrev_b32 v{vG8}, 3, v{vG}", vr=[vG], vw=[vG8])
    p.valu(f"v_readfirstlane_b32 s{sWave}, v{vTmp}", vr=[vTmp], sw=[sWave])
    p.valu(f"v_lshlrev_b32 v{vW}, 7, v{vG}", vr=[vG], vw=[vW])
    p.valu(f"v_lshl_add_u32 v{vW}, v{vN}, 1, v{vW}", vr=[vN, vW], vw=[vW])
    p.valu(f"v_lshlrev_b32 v{vB2o}, 12, v{vG}", vr=[vG], vw=[vB2o])
    p.valu(f"v_lshlrev_b32 v{vH0}, 4, v{vLane}", vr=[vLane], vw=[vH0])
    p.valu(f"v_add_u32 v{vH1}, 0x400, v{vH0}", vr=[vH0], vw=[vH1])
    p.valu(f"v_mov_b32 v{vTmp}, 0x80000000", vw=[vTmp])
    p.valu(f"v_cmp_gt_u32 vcc, 36, v{vLane}", vr=[vLane], sw=['vcc'])
    p.valu(f"v_cndmask_b32 v{vH1}, v{vTmp}, v{vH1}, vcc", vr=[vTmp, vH1], vw=[vH1], sr=['vcc'])
    p.valu(f"v_and_b32 v{vMo}, 31, v{vLane}", vr=[vLane], vw=[vMo])
    p.valu(f"v_cmp_gt_u32 vcc, 25, v{vMo}", vr=[vMo], sw=['vcc'])
    p.valu(f"v_lshlrev_b32 v{vMo}, 2, v{vMo}", vr=[vMo], vw=[vMo])
    p.valu(f"v_lshrrev_b32 v{vRow}, 5, v{vLane}", vr=[vLane], vw=[vRow])
    p.valu(f"v_mul_u32_u24 v{vRow}, 100, v{vRow}", vr=[vRow], vw=[vRow])
    p.valu(f"v_add_u32 v{vMo}, v{vMo}, v{vRow}", vr=[vMo, vRow], vw=[vMo])
    p.valu(f"v_cndmask_b32 v{vMo}, v{vTmp}, v{vMo}, vcc", vr=[vTmp, vMo], vw=[vMo], sr=['vcc'])
    p.valu(f"v_lshl_add_u32 v{vOut}, v{vN}, 5, v{vG8}", vr=[vN, vG8], vw=[vOut])
    p.valu(f"v_cmp_gt_u32 vcc, {NB}, v{vN}", vr=[vN], sw=['vcc'])
    p.valu(f"v_cndmask_b32 v{vOut}, v{vTmp}, v{vOut}, vcc", vr=[vTmp, vOut], vw=[vOut], sr=['vcc'])
    p.salu(f"s_mul_i32 s{sB0}, s2, {WPB}", sw=[sB0])
    p.salu(f"s_add_u32 s{sB0}, s{sB0}, s{sWave}", sr=[sWave, sB0], sw=[sB0])
    p.salu(f"s_mul_i32 s{sB0}, s{sB0}, {NB}", sw=[sB0])
    p.salu(f"s_mul_i32 s{sHoff}, s{sB0}, 1600", sw=[sHoff])
    p.salu(f"s_mul_i32 s{sMoff}, s{sB0}, 100", sw=[sMoff])
    p.salu(f"s_lshl_b32 s{sToff}, s{sB0}, 5", sw=[sToff])
    p.salu(f"s_mul_i32 s{sLds}, s{sWave}, {WAVE_LDS}", sr=[sWave], sw=[sLds])
    p.salu(f"s_mov_b32 s{sNL}, 0x{NL2E:08x}", sw=[sNL])
    p.valu(f"v_lshl_add_u32 v{vRow}, v{vN}, 5, v{vG8}", vr=[vN, vG8], vw=[vRow])
    p.valu(f"v_add_u32 v{vRow}, s{sLds}, v{vRow}", vr=[vRow], vw=[vRow], sr=[sLds])
    p.valu(f"v_lshlrev_b32 v{vTr}, 3, v{vLane}", vr=[vLane], vw=[vTr])
    p.valu(f"v_add_u32 v{vTr}, s{sLds}, v{vTr}", vr=[vTr], vw=[vTr], sr=[sLds])
    p.valu(f"v_lshlrev_b32 v{vMk}, 1, v{vN}", vr=[vN], vw=[vMk])
    p.valu(f"v_add_u32 v{vMk}, s{sLds}, v{vMk}", vr=[vMk], vw=[vMk], sr=[sLds])
    p.wait(lgkm=0)
    def srd(d, ptr, nbytes):
        p.salu(f"s_mov_b32 s{d}, s{ptr}", sw=[d])
        p.salu(f"s_and_b32 s{d+1}, s{ptr+1}, 0xffff", sw=[d + 1])
        p.salu(f"s_mov_b32 s{d+2}, {nbytes}", sw=[d + 2])
        p.salu(f"s_mov_b32 s{d+3}, 0x00020000", sw=[d + 3])
    srd(sW1, 10, 2048)
    nvm = 0
    for mi, reg in enumerate((wa, wb, wc, wd)):
        for r in range(4):
            p.vmem(f"buffer_load_ushort v{reg+r}, v{vW}, {S(sW1,4)}, 0 offen offset:{mi*512+r*32}", vr=[vW], vw=[reg + r])
            nvm += 1
    srd(sB1, 12, 32)
    srd(sW2, 14, 32)
    srd(sB2, 16, 4)
    srd(sT, 4, B * 32)
    p.vmem(f"buffer_load_dwordx2 {R(B1raw,2)}, v{vG8}, {S(sB1,4)}, 0 offen", vr=[vG8], vw=rng(B1raw, 2)); nvm += 1
    p.vmem(f"buffer_load_dwordx2 {R(W2base,2)}, v{vG8}, {S(sW2,4)}, 0 offen", vr=[vG8], vw=rng(W2base, 2)); nvm += 1
    p.vmem(f"buffer_load_ushort v{b2raw}, v{vB2o}, {S(sB2,4)}, 0 offen", vr=[vB2o], vw=[b2raw]); nvm += 1
    for b in range(NB):
        p.vmem(f"buffer_load_dwordx2 {R(Traw+2*b,2)}, v{vG8}, {S(sT,4)}, s{sToff} offen offset:{32*b}", vr=[vG8], vw=rng(Traw + 2 * b, 2)); nvm += 1
    srd(sM, 8, B * 100)
    srd(sH, 6, B * 1600)
    srd(sO, 18, B * 32)
    ndma = 0
    for u in range(NB // 2):
        p.salu(f"s_add_u32 m0, s{sLds}, {NB*2048 + u*256}", sw=['m0'])
        p.salu(f"s_add_u32 s{sTmp}, s{sMoff}, {u*200}", sw=[sTmp])
        p.vmem(f"buffer_load_dword v{vMo}, {S(sM,4)}, s{sTmp} offen lds", vr=[vMo], sr=['m0'])
        ndma += 1
    for b in range(NB):
        p.salu(f"s_add_u32 m0, s{sLds}, {b*2048}", sw=['m0'])
        p.salu(f"s_add_u32 s{sTmp}, s{sHoff}, {b*1600}", sw=[sTmp])
        p.vmem(f"buffer_load_dwordx4 v{vH0}, {S(sH,4)}, s{sTmp} offen lds", vr=[vH0], sr=['m0'])
        p.salu(f"s_add_u32 m0, s{sLds}, {b*2048+1024}", sw=['m0'])
        p.salu(f"s_nop 0")
        p.vmem(f"buffer_load_dwordx4 v{vH1}, {S(sH,4)}, s{sTmp} offen lds", vr=[vH1], sr=['m0'])
        ndma += 2
    p.wait(vm=ndma + NB)
    for reg in (wa, wb, wc, wd):
        for r in range(4):
            p.valu(f"v_lshlrev_b32 v{reg+r}, 16, v{reg+r}", vr=[reg + r], vw=[reg + r])
    for r in range(0, 4, 2):
        p.valu(f"v_pk_add_f32 {R(P+r,2)}, {R(wa+r,2)}, {R(wc+r,2)}", vr=rng(wa + r, 2) + rng(wc + r, 2), vw=rng(P + r, 2))
        p.valu(f"v_pk_add_f32 {R(wb+r,2)}, {R(wb+r,2)}, {R(wc+r,2)} neg_lo:[0,1] neg_hi:[0,1]", vr=rng(wb + r, 2) + rng(wc + r, 2), vw=rng(wb + r, 2))
    for r in range(4):
        p.valu(f"v_mul_f32 v{P+r}, s{sNL}, v{P+r}", vr=[P + r], vw=[P + r], sr=[sNL])
        p.valu(f"v_mul_f32 v{Q+r}, s{sNL}, v{wd+r}", vr=[wd + r], vw=[Q + r], sr=[sNL])
        p.valu(f"v_mul_f32 v{wb+r}, s{sNL}, v{wb+r}", vr=[wb + r], vw=[wb + r], sr=[sNL])
    def split(src, hi, lo, u):
        p.valu(f"v_cvt_pk_bf16_f32 v{hi}, v{src}, v{src+1}", vr=[src, src + 1], vw=[hi])
        p.valu(f"v_cvt_pk_bf16_f32 v{hi+1}, v{src+2}, v{src+3}", vr=[src + 2, src + 3], vw=[hi + 1])
        if lo is None:
            return
        p.valu(f"v_lshlrev_b32 v{u}, 16, v{hi}", vr=[hi], vw=[u])
        p.valu(f"v_and_b32 v{u+1}, 0xffff0000, v{hi}", vr=[hi], vw=[u + 1])
        p.valu(f"v_lshlrev_b32 v{u+2}, 16, v{hi+1}", vr=[hi + 1], vw=[u + 2])
        p.valu(f"v_and_b32 v{u+3}, 0xffff0000, v{hi+1}", vr=[hi + 1], vw=[u + 3])
        for r in (0, 2):
            p.valu(f"v_pk_add_f32 {R(u+r,2)}, {R(src+r,2)}, {R(u+r,2)} neg_lo:[0,1] neg_hi:[0,1]", vr=rng(src + r, 2) + rng(u + r, 2), vw=rng(u + r, 2))
        p.valu(f"v_cvt_pk_bf16_f32 v{lo}, v{u}, v{u+1}", vr=[u, u + 1], vw=[lo])
        p.valu(f"v_cvt_pk_bf16_f32 v{lo+1}, v{u+2}, v{u+3}", vr=[u + 2, u + 3], vw=[lo + 1])
    split(wb, Wch, Wcl, wc)
    p.valu(f"v_lshlrev_b32 v{B1}, 16, v{B1raw}", vr=[B1raw], vw=[B1])
    p.valu(f"v_and_b32 v{B1+1}, 0xffff0000, v{B1raw}", vr=[B1raw], vw=[B1 + 1])
    p.valu(f"v_lshlrev_b32 v{B1+2}, 16, v{B1raw+1}", vr=[B1raw + 1], vw=[B1 + 2])
    p.valu(f"v_and_b32 v{B1+3}, 0xffff0000, v{B1raw+1}", vr=[B1raw + 1], vw=[B1 + 3])
    for r in range(4):
        p.valu(f"v_mul_f32 v{B1+r}, s{sNL}, v{B1+r}", vr=[B1 + r], vw=[B1 + r], sr=[sNL])
    p.valu(f"v_lshlrev_b32 v{W2base+2}, 16, v{b2raw}", vr=[b2raw], vw=[W2base + 2])
    for r in range(4):
        p.valu(f"v_mov_b32 v{D3+r}, 0", vw=[D3 + r])
    p.wait(vm=ndma)
    for b in range(NB):
        T = Traw + 2 * b
        p.valu(f"v_lshlrev_b32 v{tt}, 16, v{T}", vr=[T], vw=[tt])
        p.valu(f"v_and_b32 v{tt+1}, 0xffff0000, v{T}", vr=[T], vw=[tt + 1])
        p.valu(f"v_lshlrev_b32 v{tt+2}, 16, v{T+1}", vr=[T + 1], vw=[tt + 2])
        p.valu(f"v_and_b32 v{tt+3}, 0xffff0000, v{T+1}", vr=[T + 1], vw=[tt + 3])
        for r in (0, 2):
            p.valu(f"v_pk_fma_f32 {R(mm+r,2)}, {R(tt+r,2)}, {R(Q+r,2)}, {R(P+r,2)}", vr=rng(tt + r, 2) + rng(Q + r, 2) + rng(P + r, 2), vw=rng(mm + r, 2))
        split(mm, Mh(b), Ml(b) if use_lo else None, uu)
        p.mfma("v_mfma_f32_16x16x16_bf16", Cb(b), Wch, 2, T, 2, B1)
        p.mfma("v_mfma_f32_16x16x16_bf16", Cb(b), Wcl, 2, T, 2, Cb(b))
        m = 0x0001000100010001 << b
        p.salu(f"s_mov_b32 s{sMask}, 0x{m & 0xffffffff:08x}", sw=[sMask])
        p.salu(f"s_mov_b32 s{sMask+1}, 0x{m >> 32:08x}", sw=[sMask + 1])
        for r in range(3):
            p.valu(f"v_cndmask_b32 v{W2B(b)+r}, 0, v{W2base+r}, {S(sMask,2)}", vr=[W2base + r], vw=[W2B(b) + r], sr=[sMask, sMask + 1])
        p.valu(f"v_mov_b32 v{W2B(b)+3}, 0", vw=[W2B(b) + 3])
    for q in range(4):
        p.valu(f"v_mov_b32 v{A2(q)+2}, 0", vw=[A2(q) + 2])
        p.valu(f"v_mov_b32 v{A2(q)+3}, 0", vw=[A2(q) + 3])
    for b in range(NB):
        p.comment(f"batch {b}")
        p.wait(vm=2 * (NB - 1 - b))
        for q in range(4):
            p.ds(f"ds_read_b64 {R(Rr(q),2)}, v{vRow} offset:{b*2048+q*512}", vr=[vRow], vw=rng(Rr(q), 2))
        for q in range(4):
            p.ds(f"ds_read_u16_d16_hi v{A2(q)+2}, v{vMk} offset:{NB*2048+b*128+q*32}", vr=[vMk, A2(q) + 2], vw=[A2(q) + 2])
        for q in range(4):
            p.ds(f"ds_read_b64_tr_b16 {R(X(q),2)}, v{vTr} offset:{b*2048+q*512}", vr=[vTr], vw=rng(X(q), 2))
        for q in range(4):
            p.wait(lgkm=11 - q)
            p.mfma("v_mfma_f32_16x16x16_bf16", D1(q), Mh(b), 2, Rr(q), 2, Cb(b))
        if use_lo:
            for q in range(4):
                p.mfma("v_mfma_f32_16x16x16_bf16", D1(q), Ml(b), 2, Rr(q), 2, D1(q))
        for q in range(4):
            for r in range(4):
                p.trans("v_exp_f32", D1(q) + r, D1(q) + r)
        for q in range(4):
            for r in (0, 2):
                p.valu(f"v_pk_add_f32 {R(D1(q)+r,2)}, {R(D1(q)+r,2)}, 1.0 op_sel_hi:[1,0]", vr=rng(D1(q) + r, 2), vw=rng(D1(q) + r, 2))
        for q in range(4):
            for r in range(4):
                p.trans("v_rcp_f32", D1(q) + r, D1(q) + r)
        p.wait(lgkm=4)
        for q in range(4):
            for r in (0, 2):
                p.valu(f"v_pk_mul_f32 {R(D1(q)+r,2)}, {R(D1(q)+r,2)}, {R(A2(q)+2,2)} op_sel_hi:[1,0]", vr=rng(D1(q) + r, 2) + [A2(q) + 2], vw=rng(D1(q) + r, 2))
            p.valu(f"v_cvt_pk_bf16_f32 v{A2(q)}, v{D1(q)}, v{D1(q)+1}", vr=[D1(q), D1(q) + 1], vw=[A2(q)])
            p.valu(f"v_cvt_pk_bf16_f32 v{A2(q)+1}, v{D1(q)+2}, v{D1(q)+3}", vr=[D1(q) + 2, D1(q) + 3], vw=[A2(q) + 1])
        for q in range(4):
            p.mfma("v_mfma_f32_16x16x32_bf16", D1(q), A2(q), 4, W2B(b), 4, None)
        for q in range(4):
            p.valu(f"v_cvt_pk_bf16_f32 v{Sr(q)}, v{D1(q)}, v{D1(q)+1}", vr=[D1(q), D1(q) + 1], vw=[Sr(q)])
            p.valu(f"v_cvt_pk_bf16_f32 v{Sr(q)+1}, v{D1(q)+2}, v{D1(q)+3}", vr=[D1(q) + 2, D1(q) + 3], vw=[Sr(q) + 1])
        p.wait(lgkm=0)
        for q in (0, 2):
            p.mfma("v_mfma_f32_16x16x32_bf16", D3, X(q), 4, Sr(q), 4, D3)
    p.valu(f"v_cvt_pk_bf16_f32 v{D1(0)}, v{D3}, v{D3+1}", vr=[D3, D3 + 1], vw=[D1(0)])
    p.valu(f"v_cvt_pk_bf16_f32 v{D1(0)+1}, v{D3+2}, v{D3+3}", vr=[D3 + 2, D3 + 3], vw=[D1(0) + 1])
    p.vmem(f"buffer_store_dwordx2 {R(D1(0),2)}, v{vOut}, {S(sO,4)}, s{sToff} offen", vr=[vOut, D1(0), D1(0) + 1])
    p.label("L_end")
    p.raw("s_endpgm")
    p.fix_hazards()
    acc = (nvgpr + 3) // 4 * 4
    hdr = f"""; DIN local-activation kernel (generated by gen_v1.py) NB={NB} WPB={WPB}
; @launch grid=({NWG},1,1) block=({64*WPB},1,1) lds={LDS}
.amdgcn_target "amdgcn-amd-amdhsa--gfx950"
.text
.globl {NAME}_kernel
.p2align 8
.type {NAME}_kernel,@function
{NAME}_kernel:
"""
    ftr = f"""
.section .rodata,"a"
.p2align 6
.amdhsa_kernel {NAME}_kernel
  .amdhsa_next_free_vgpr {nvgpr}
  .amdhsa_next_free_sgpr 64
  .amdhsa_accum_offset {acc}
  .amdhsa_group_segment_fixed_size 0
  .amdhsa_kernarg_size 80
  .amdhsa_user_sgpr_count 2
  .amdhsa_user_sgpr_kernarg_segment_ptr 1
  .amdhsa_system_sgpr_workgroup_id_x 1
.end_amdhsa_kernel
"""
    return hdr + p.text() + "\n" + ftr

if __name__ == "__main__":
    out = sys.argv[1] if len(sys.argv) > 1 else f"cdna_kernels/{NAME}.s"
    open(out, "w").write(gen())
    print("wrote", out)
```

```python
import sys
from asmlib import *

NAME = "standalone__sequential_behavior_din__recsys"
B, L, D = 16384, 50, 16

def gen(NB=4, WPB=4, use_lo=True, diag=False, pol=0):
    POL = ['', ' nt', ' sc1', ' sc0 sc1', ' sc0 sc1 nt', ' sc1 nt', ' sc0 nt', ' sc0'][pol]
    NWG = B // (NB * WPB)
    WAVE_LDS = NB * 2176
    LDS = WAVE_LDS * WPB
    p = Prog()
    NL2E = 0xBFB8AA3B

    sH, sM, sT, sO, sW1, sB1, sW2, sB2 = 20, 24, 28, 32, 36, 40, 44, 48
    sWave, sB0, sHoff, sMoff, sLds, sTmp, sToff = 52, 53, 54, 55, 56, 57, 58
    sMask = 60
    sNL = 62

    vLane, vN, vG = 1, 2, 3
    vRow, vTr, vMk, vOut = 4, 5, 6, 7
    D3 = 8
    def Mh(b): return 12 + 12 * b
    def Ml(b): return 12 + 12 * b + 2
    def Cb(b): return 12 + 12 * b + 4
    def W2B(b): return 12 + 12 * b + 8
    base = 12 + 12 * NB
    def A2(q): return base + 4 * q
    def Rr(q): return base + 16 + 2 * q
    def X(q): return base + 24 + 2 * q
    def Sr(q): return base + 32 + 2 * q
    def D1(q): return base + 40 + 4 * q
    sp = base + 56
    vH0, vH1, vMo, vW, vG8, vB2o, vTmp = sp, sp + 1, sp + 2, sp + 3, sp + 4, sp + 5, sp + 6
    nvgpr = sp + 8
    wa, wb, wc, wd = base + 16, base + 20, base + 24, base + 28
    P, Q = base + 32, base + 36
    Wch, Wcl = base + 40, base + 42
    B1, B1raw = base + 44, base + 48
    W2base, b2raw = base + 50, base + 54
    Traw = base
    assert 2 * NB <= 8
    tt, mm = base + 8, base + 12
    uu, ll = wa, wb

    p.salu(f"s_cmp_ge_u32 s2, {NWG}")
    p.raw("s_cbranch_scc1 L_end", 'branch')
    if diag:
        p.raw("s_memrealtime s[64:65]", 'smem')
        p.raw("s_load_dwordx2 s[76:77], s[0:1], 72", 'smem')
    p.raw("s_load_dwordx16 s[4:19], s[0:1], 0", 'smem')
    p.valu(f"v_and_b32 v{vLane}, 63, v0", vr=[0], vw=[vLane])
    p.valu(f"v_and_b32 v{vN}, 15, v0", vr=[0], vw=[vN])
    p.valu(f"v_bfe_u32 v{vG}, v0, 4, 2", vr=[0], vw=[vG])
    p.valu(f"v_lshrrev_b32 v{vTmp}, 6, v0", vr=[0], vw=[vTmp])
    p.valu(f"v_lshlrev_b32 v{vG8}, 3, v{vG}", vr=[vG], vw=[vG8])
    p.valu(f"v_readfirstlane_b32 s{sWave}, v{vTmp}", vr=[vTmp], sw=[sWave])
    p.valu(f"v_lshlrev_b32 v{vW}, 7, v{vG}", vr=[vG], vw=[vW])
    p.valu(f"v_lshl_add_u32 v{vW}, v{vN}, 1, v{vW}", vr=[vN, vW], vw=[vW])
    p.valu(f"v_lshlrev_b32 v{vB2o}, 12, v{vG}", vr=[vG], vw=[vB2o])
    p.valu(f"v_lshlrev_b32 v{vH0}, 4, v{vLane}", vr=[vLane], vw=[vH0])
    p.valu(f"v_add_u32 v{vH1}, 0x400, v{vH0}", vr=[vH0], vw=[vH1])
    p.valu(f"v_mov_b32 v{vTmp}, 0x80000000", vw=[vTmp])
    p.valu(f"v_cmp_gt_u32 vcc, 36, v{vLane}", vr=[vLane], sw=['vcc'])
    p.valu(f"v_cndmask_b32 v{vH1}, v{vTmp}, v{vH1}, vcc", vr=[vTmp, vH1], vw=[vH1], sr=['vcc'])
    p.valu(f"v_and_b32 v{vMo}, 31, v{vLane}", vr=[vLane], vw=[vMo])
    p.valu(f"v_cmp_gt_u32 vcc, 25, v{vMo}", vr=[vMo], sw=['vcc'])
    p.valu(f"v_lshlrev_b32 v{vMo}, 2, v{vMo}", vr=[vMo], vw=[vMo])
    p.valu(f"v_lshrrev_b32 v{vRow}, 5, v{vLane}", vr=[vLane], vw=[vRow])
    p.valu(f"v_mul_u32_u24 v{vRow}, 100, v{vRow}", vr=[vRow], vw=[vRow])
    p.valu(f"v_add_u32 v{vMo}, v{vMo}, v{vRow}", vr=[vMo, vRow], vw=[vMo])
    p.valu(f"v_cndmask_b32 v{vMo}, v{vTmp}, v{vMo}, vcc", vr=[vTmp, vMo], vw=[vMo], sr=['vcc'])
    p.valu(f"v_lshl_add_u32 v{vOut}, v{vN}, 5, v{vG8}", vr=[vN, vG8], vw=[vOut])
    p.valu(f"v_cmp_gt_u32 vcc, {NB}, v{vN}", vr=[vN], sw=['vcc'])
    p.valu(f"v_cndmask_b32 v{vOut}, v{vTmp}, v{vOut}, vcc", vr=[vTmp, vOut], vw=[vOut], sr=['vcc'])
    p.salu(f"s_mul_i32 s{sB0}, s2, {WPB}", sw=[sB0])
    p.salu(f"s_add_u32 s{sB0}, s{sB0}, s{sWave}", sr=[sWave, sB0], sw=[sB0])
    p.salu(f"s_mul_i32 s{sB0}, s{sB0}, {NB}", sw=[sB0])
    p.salu(f"s_mul_i32 s{sHoff}, s{sB0}, 1600", sw=[sHoff])
    p.salu(f"s_mul_i32 s{sMoff}, s{sB0}, 100", sw=[sMoff])
    p.salu(f"s_lshl_b32 s{sToff}, s{sB0}, 5", sw=[sToff])
    p.salu(f"s_mul_i32 s{sLds}, s{sWave}, {WAVE_LDS}", sr=[sWave], sw=[sLds])
    p.salu(f"s_mov_b32 s{sNL}, 0x{NL2E:08x}", sw=[sNL])
    p.valu(f"v_lshl_add_u32 v{vRow}, v{vN}, 5, v{vG8}", vr=[vN, vG8], vw=[vRow])
    p.valu(f"v_add_u32 v{vRow}, s{sLds}, v{vRow}", vr=[vRow], vw=[vRow], sr=[sLds])
    p.valu(f"v_lshlrev_b32 v{vTr}, 3, v{vLane}", vr=[vLane], vw=[vTr])
    p.valu(f"v_add_u32 v{vTr}, s{sLds}, v{vTr}", vr=[vTr], vw=[vTr], sr=[sLds])
    p.valu(f"v_lshlrev_b32 v{vMk}, 1, v{vN}", vr=[vN], vw=[vMk])
    p.valu(f"v_add_u32 v{vMk}, s{sLds}, v{vMk}", vr=[vMk], vw=[vMk], sr=[sLds])
    p.wait(lgkm=0)
    def srd(d, ptr, nbytes):
        p.salu(f"s_mov_b32 s{d}, s{ptr}", sw=[d])
        p.salu(f"s_and_b32 s{d+1}, s{ptr+1}, 0xffff", sw=[d + 1])
        p.salu(f"s_mov_b32 s{d+2}, {nbytes}", sw=[d + 2])
        p.salu(f"s_mov_b32 s{d+3}, 0x00020000", sw=[d + 3])
    srd(sW1, 10, 2048)
    nvm = 0
    for mi, reg in enumerate((wa, wb, wc, wd)):
        for r in range(4):
            p.vmem(f"buffer_load_ushort v{reg+r}, v{vW}, {S(sW1,4)}, 0 offen offset:{mi*512+r*32}", vr=[vW], vw=[reg + r])
            nvm += 1
    srd(sB1, 12, 32)
    srd(sW2, 14, 32)
    srd(sB2, 16, 4)
    srd(sT, 4, B * 32)
    p.vmem(f"buffer_load_dwordx2 {R(B1raw,2)}, v{vG8}, {S(sB1,4)}, 0 offen", vr=[vG8], vw=rng(B1raw, 2)); nvm += 1
    p.vmem(f"buffer_load_dwordx2 {R(W2base,2)}, v{vG8}, {S(sW2,4)}, 0 offen", vr=[vG8], vw=rng(W2base, 2)); nvm += 1
    p.vmem(f"buffer_load_ushort v{b2raw}, v{vB2o}, {S(sB2,4)}, 0 offen", vr=[vB2o], vw=[b2raw]); nvm += 1
    for b in range(NB):
        p.vmem(f"buffer_load_dwordx2 {R(Traw+2*b,2)}, v{vG8}, {S(sT,4)}, s{sToff} offen offset:{32*b}", vr=[vG8], vw=rng(Traw + 2 * b, 2)); nvm += 1
    srd(sM, 8, B * 100)
    srd(sH, 6, B * 1600)
    srd(sO, 18, B * 32)
    ndma = 0
    for u in range(NB // 2):
        p.salu(f"s_add_u32 m0, s{sLds}, {NB*2048 + u*256}", sw=['m0'])
        p.salu(f"s_add_u32 s{sTmp}, s{sMoff}, {u*200}", sw=[sTmp])
        p.vmem(f"buffer_load_dword v{vMo}, {S(sM,4)}, s{sTmp} offen{POL} lds", vr=[vMo], sr=['m0'])
        ndma += 1
    for b in range(NB):
        p.salu(f"s_add_u32 m0, s{sLds}, {b*2048}", sw=['m0'])
        p.salu(f"s_add_u32 s{sTmp}, s{sHoff}, {b*1600}", sw=[sTmp])
        p.vmem(f"buffer_load_dwordx4 v{vH0}, {S(sH,4)}, s{sTmp} offen{POL} lds", vr=[vH0], sr=['m0'])
        p.salu(f"s_add_u32 m0, s{sLds}, {b*2048+1024}", sw=['m0'])
        p.salu(f"s_nop 0")
        p.vmem(f"buffer_load_dwordx4 v{vH1}, {S(sH,4)}, s{sTmp} offen{POL} lds", vr=[vH1], sr=['m0'])
        ndma += 2
    if diag:
        p.raw("s_memrealtime s[66:67]", 'smem')
    p.wait(vm=ndma + NB)
    if diag:
        p.raw("s_memrealtime s[68:69]", 'smem')
    for reg in (wa, wb, wc, wd):
        for r in range(4):
            p.valu(f"v_lshlrev_b32 v{reg+r}, 16, v{reg+r}", vr=[reg + r], vw=[reg + r])
    for r in range(0, 4, 2):
        p.valu(f"v_pk_add_f32 {R(P+r,2)}, {R(wa+r,2)}, {R(wc+r,2)}", vr=rng(wa + r, 2) + rng(wc + r, 2), vw=rng(P + r, 2))
        p.valu(f"v_pk_add_f32 {R(wb+r,2)}, {R(wb+r,2)}, {R(wc+r,2)} neg_lo:[0,1] neg_hi:[0,1]", vr=rng(wb + r, 2) + rng(wc + r, 2), vw=rng(wb + r, 2))
    for r in range(4):
        p.valu(f"v_mul_f32 v{P+r}, s{sNL}, v{P+r}", vr=[P + r], vw=[P + r], sr=[sNL])
        p.valu(f"v_mul_f32 v{Q+r}, s{sNL}, v{wd+r}", vr=[wd + r], vw=[Q + r], sr=[sNL])
        p.valu(f"v_mul_f32 v{wb+r}, s{sNL}, v{wb+r}", vr=[wb + r], vw=[wb + r], sr=[sNL])
    def split(src, hi, lo, u):
        p.valu(f"v_cvt_pk_bf16_f32 v{hi}, v{src}, v{src+1}", vr=[src, src + 1], vw=[hi])
        p.valu(f"v_cvt_pk_bf16_f32 v{hi+1}, v{src+2}, v{src+3}", vr=[src + 2, src + 3], vw=[hi + 1])
        if lo is None:
            return
        p.valu(f"v_lshlrev_b32 v{u}, 16, v{hi}", vr=[hi], vw=[u])
        p.valu(f"v_and_b32 v{u+1}, 0xffff0000, v{hi}", vr=[hi], vw=[u + 1])
        p.valu(f"v_lshlrev_b32 v{u+2}, 16, v{hi+1}", vr=[hi + 1], vw=[u + 2])
        p.valu(f"v_and_b32 v{u+3}, 0xffff0000, v{hi+1}", vr=[hi + 1], vw=[u + 3])
        for r in (0, 2):
            p.valu(f"v_pk_add_f32 {R(u+r,2)}, {R(src+r,2)}, {R(u+r,2)} neg_lo:[0,1] neg_hi:[0,1]", vr=rng(src + r, 2) + rng(u + r, 2), vw=rng(u + r, 2))
        p.valu(f"v_cvt_pk_bf16_f32 v{lo}, v{u}, v{u+1}", vr=[u, u + 1], vw=[lo])
        p.valu(f"v_cvt_pk_bf16_f32 v{lo+1}, v{u+2}, v{u+3}", vr=[u + 2, u + 3], vw=[lo + 1])
    split(wb, Wch, Wcl, wc)
    p.valu(f"v_lshlrev_b32 v{B1}, 16, v{B1raw}", vr=[B1raw], vw=[B1])
    p.valu(f"v_and_b32 v{B1+1}, 0xffff0000, v{B1raw}", vr=[B1raw], vw=[B1 + 1])
    p.valu(f"v_lshlrev_b32 v{B1+2}, 16, v{B1raw+1}", vr=[B1raw + 1], vw=[B1 + 2])
    p.valu(f"v_and_b32 v{B1+3}, 0xffff0000, v{B1raw+1}", vr=[B1raw + 1], vw=[B1 + 3])
    for r in range(4):
        p.valu(f"v_mul_f32 v{B1+r}, s{sNL}, v{B1+r}", vr=[B1 + r], vw=[B1 + r], sr=[sNL])
    p.valu(f"v_lshlrev_b32 v{W2base+2}, 16, v{b2raw}", vr=[b2raw], vw=[W2base + 2])
    for r in range(4):
        p.valu(f"v_mov_b32 v{D3+r}, 0", vw=[D3 + r])
    p.wait(vm=ndma)
    for b in range(NB):
        T = Traw + 2 * b
        p.valu(f"v_lshlrev_b32 v{tt}, 16, v{T}", vr=[T], vw=[tt])
        p.valu(f"v_and_b32 v{tt+1}, 0xffff0000, v{T}", vr=[T], vw=[tt + 1])
        p.valu(f"v_lshlrev_b32 v{tt+2}, 16, v{T+1}", vr=[T + 1], vw=[tt + 2])
        p.valu(f"v_and_b32 v{tt+3}, 0xffff0000, v{T+1}", vr=[T + 1], vw=[tt + 3])
        for r in (0, 2):
            p.valu(f"v_pk_fma_f32 {R(mm+r,2)}, {R(tt+r,2)}, {R(Q+r,2)}, {R(P+r,2)}", vr=rng(tt + r, 2) + rng(Q + r, 2) + rng(P + r, 2), vw=rng(mm + r, 2))
        split(mm, Mh(b), Ml(b) if use_lo else None, uu)
        p.mfma("v_mfma_f32_16x16x16_bf16", Cb(b), Wch, 2, T, 2, B1)
        p.mfma("v_mfma_f32_16x16x16_bf16", Cb(b), Wcl, 2, T, 2, Cb(b))
        m = 0x0001000100010001 << b
        p.salu(f"s_mov_b32 s{sMask}, 0x{m & 0xffffffff:08x}", sw=[sMask])
        p.salu(f"s_mov_b32 s{sMask+1}, 0x{m >> 32:08x}", sw=[sMask + 1])
        for r in range(3):
            p.valu(f"v_cndmask_b32 v{W2B(b)+r}, 0, v{W2base+r}, {S(sMask,2)}", vr=[W2base + r], vw=[W2B(b) + r], sr=[sMask, sMask + 1])
        p.valu(f"v_mov_b32 v{W2B(b)+3}, 0", vw=[W2B(b) + 3])
    for q in range(4):
        p.valu(f"v_mov_b32 v{A2(q)+2}, 0", vw=[A2(q) + 2])
        p.valu(f"v_mov_b32 v{A2(q)+3}, 0", vw=[A2(q) + 3])
    for b in range(NB):
        p.comment(f"batch {b}")
        p.wait(vm=2 * (NB - 1 - b))
        if diag and b == 0:
            p.raw("s_memrealtime s[70:71]", 'smem')
            p.wait(lgkm=0)
        if diag and b == NB - 1:
            p.raw("s_memrealtime s[72:73]", 'smem')
            p.wait(lgkm=0)
        for q in range(4):
            p.ds(f"ds_read_b64 {R(Rr(q),2)}, v{vRow} offset:{b*2048+q*512}", vr=[vRow], vw=rng(Rr(q), 2))
        for q in range(4):
            p.ds(f"ds_read_u16_d16_hi v{A2(q)+2}, v{vMk} offset:{NB*2048+b*128+q*32}", vr=[vMk, A2(q) + 2], vw=[A2(q) + 2])
        for q in range(4):
            p.ds(f"ds_read_b64_tr_b16 {R(X(q),2)}, v{vTr} offset:{b*2048+q*512}", vr=[vTr], vw=rng(X(q), 2))
        for q in range(4):
            p.wait(lgkm=11 - q)
            p.mfma("v_mfma_f32_16x16x16_bf16", D1(q), Mh(b), 2, Rr(q), 2, Cb(b))
        if use_lo:
            for q in range(4):
                p.mfma("v_mfma_f32_16x16x16_bf16", D1(q), Ml(b), 2, Rr(q), 2, D1(q))
        for q in range(4):
            for r in range(4):
                p.trans("v_exp_f32", D1(q) + r, D1(q) + r)
        for q in range(4):
            for r in (0, 2):
                p.valu(f"v_pk_add_f32 {R(D1(q)+r,2)}, {R(D1(q)+r,2)}, 1.0 op_sel_hi:[1,0]", vr=rng(D1(q) + r, 2), vw=rng(D1(q) + r, 2))
        for q in range(4):
            for r in range(4):
                p.trans("v_rcp_f32", D1(q) + r, D1(q) + r)
        p.wait(lgkm=4)
        for q in range(4):
            for r in (0, 2):
                p.valu(f"v_pk_mul_f32 {R(D1(q)+r,2)}, {R(D1(q)+r,2)}, {R(A2(q)+2,2)} op_sel_hi:[1,0]", vr=rng(D1(q) + r, 2) + [A2(q) + 2], vw=rng(D1(q) + r, 2))
            p.valu(f"v_cvt_pk_bf16_f32 v{A2(q)}, v{D1(q)}, v{D1(q)+1}", vr=[D1(q), D1(q) + 1], vw=[A2(q)])
            p.valu(f"v_cvt_pk_bf16_f32 v{A2(q)+1}, v{D1(q)+2}, v{D1(q)+3}", vr=[D1(q) + 2, D1(q) + 3], vw=[A2(q) + 1])
        for q in range(4):
            p.mfma("v_mfma_f32_16x16x32_bf16", D1(q), A2(q), 4, W2B(b), 4, None)
        for q in range(4):
            p.valu(f"v_cvt_pk_bf16_f32 v{Sr(q)}, v{D1(q)}, v{D1(q)+1}", vr=[D1(q), D1(q) + 1], vw=[Sr(q)])
            p.valu(f"v_cvt_pk_bf16_f32 v{Sr(q)+1}, v{D1(q)+2}, v{D1(q)+3}", vr=[D1(q) + 2, D1(q) + 3], vw=[Sr(q) + 1])
        p.wait(lgkm=0)
        for q in (0, 2):
            p.mfma("v_mfma_f32_16x16x32_bf16", D3, X(q), 4, Sr(q), 4, D3)
    p.valu(f"v_cvt_pk_bf16_f32 v{D1(0)}, v{D3}, v{D3+1}", vr=[D3, D3 + 1], vw=[D1(0)])
    p.valu(f"v_cvt_pk_bf16_f32 v{D1(0)+1}, v{D3+2}, v{D3+3}", vr=[D3 + 2, D3 + 3], vw=[D1(0) + 1])
    p.vmem(f"buffer_store_dwordx2 {R(D1(0),2)}, v{vOut}, {S(sO,4)}, s{sToff} offen", vr=[vOut, D1(0), D1(0) + 1])
    if diag:
        p.raw("s_memrealtime s[74:75]", 'smem')
        p.wait(lgkm=0)
        p.salu("s_mov_b32 s80, s76"); p.salu("s_and_b32 s81, s77, 0xffff"); p.salu("s_mov_b32 s82, 0x1000000"); p.salu("s_mov_b32 s83, 0x20000")
        p.raw("s_getreg_b32 s78, hwreg(HW_REG_XCC_ID)", 'salu')
        p.raw("s_getreg_b32 s79, hwreg(HW_REG_HW_ID)", 'salu')
        for i in range(8):
            p.valu(f"v_mov_b32 v{20+i}, s{64+2*i if i < 6 else 72+i}", vw=[20+i])
        p.salu(f"s_lshl_b32 s84, s{sB0}, {6}"); p.salu(f"s_lshr_b32 s84, s84, {NB.bit_length()-1}")
        p.valu("v_mov_b32 v30, 0", vw=[30])
        p.raw("s_mov_b64 exec, 1", 'salu')
        p.vmem("buffer_store_dwordx4 v[20:23], v30, s[80:83], s84 offen", vr=[20,21,22,23,30])
        p.vmem("buffer_store_dwordx4 v[24:27], v30, s[80:83], s84 offen offset:16", vr=[24,25,26,27,30])
    p.label("L_end")
    p.raw("s_endpgm")
    p.fix_hazards()
    acc = (nvgpr + 3) // 4 * 4
    hdr = f"""; DIN local-activation kernel (generated by gen_v1.py) NB={NB} WPB={WPB}
; @launch grid=({NWG},1,1) block=({64*WPB},1,1) lds={LDS}
.amdgcn_target "amdgcn-amd-amdhsa--gfx950"
.text
.globl {NAME}_kernel
.p2align 8
.type {NAME}_kernel,@function
{NAME}_kernel:
"""
    ftr = f"""
.section .rodata,"a"
.p2align 6
.amdhsa_kernel {NAME}_kernel
  .amdhsa_next_free_vgpr {nvgpr}
  .amdhsa_next_free_sgpr {96 if diag else 64}
  .amdhsa_accum_offset {acc}
  .amdhsa_group_segment_fixed_size 0
  .amdhsa_kernarg_size 80
  .amdhsa_user_sgpr_count 2
  .amdhsa_user_sgpr_kernarg_segment_ptr 1
  .amdhsa_system_sgpr_workgroup_id_x 1
.end_amdhsa_kernel
"""
    return hdr + p.text() + "\n" + ftr

if __name__ == "__main__":
    out = sys.argv[1] if len(sys.argv) > 1 else f"cdna_kernels/{NAME}.s"
    kw = {}
    for a in sys.argv[2:]:
        k, v = a.split('=')
        kw[k] = int(v)
    open(out, "w").write(gen(**kw))
    print("wrote", out)
```

```python
import sys
from asmlib import *

NAME = "standalone__sequential_behavior_din__recsys"
B, L, D = 16384, 50, 16

def gen(NB=4, WPB=4, use_lo=True, diag=False, pol=0):
    POL = ['', ' nt', ' sc1', ' sc0 sc1', ' sc0 sc1 nt', ' sc1 nt', ' sc0 nt', ' sc0'][pol]
    NWG = B // (NB * WPB)
    WAVE_LDS = NB * 2176
    LDS = WAVE_LDS * WPB
    p = Prog()
    NL2E = 0xBFB8AA3B

    sH, sM, sT, sO, sW1, sB1, sW2, sB2 = 20, 24, 28, 32, 36, 40, 44, 48
    sWave, sB0, sHoff, sMoff, sLds, sTmp, sToff = 52, 53, 54, 55, 56, 57, 58
    sMask = 60
    sNL = 62

    vLane, vN, vG = 1, 2, 3
    vRow, vTr, vMk, vOut = 4, 5, 6, 7
    D3 = 8
    def Mh(b): return 12 + 12 * b
    def Ml(b): return 12 + 12 * b + 2
    def Cb(b): return 12 + 12 * b + 4
    def W2B(b): return 12 + 12 * b + 8
    base = 12 + 12 * NB
    def A2(q): return base + 4 * q
    def Rr(q): return base + 16 + 2 * q
    def X(q): return base + 24 + 2 * q
    def Sr(q): return base + 32 + 2 * q
    def D1(q): return base + 40 + 4 * q
    sp = base + 56
    vH0, vH1, vMo, vW, vG8, vB2o, vTmp = sp, sp + 1, sp + 2, sp + 3, sp + 4, sp + 5, sp + 6
    nvgpr = sp + 8
    wa, wb, wc, wd = base + 16, base + 20, base + 24, base + 28
    P, Q = base + 32, base + 36
    Wch, Wcl = base + 40, base + 42
    B1, B1raw = base + 44, base + 48
    W2base, b2raw = base + 50, base + 54
    Traw = base
    assert 2 * NB <= 8
    tt, mm = base + 8, base + 12
    uu, ll = wa, wb

    p.salu(f"s_cmp_ge_u32 s2, {NWG}")
    p.raw("s_cbranch_scc1 L_end", 'branch')
    if diag:
        p.raw("s_memrealtime s[64:65]", 'smem')
        p.raw("s_load_dwordx2 s[76:77], s[0:1], 72", 'smem')
    p.raw("s_load_dwordx16 s[4:19], s[0:1], 0", 'smem')
    p.valu(f"v_and_b32 v{vLane}, 63, v0", vr=[0], vw=[vLane])
    p.valu(f"v_and_b32 v{vN}, 15, v0", vr=[0], vw=[vN])
    p.valu(f"v_bfe_u32 v{vG}, v0, 4, 2", vr=[0], vw=[vG])
    p.valu(f"v_lshrrev_b32 v{vTmp}, 6, v0", vr=[0], vw=[vTmp])
    p.valu(f"v_lshlrev_b32 v{vG8}, 3, v{vG}", vr=[vG], vw=[vG8])
    p.valu(f"v_readfirstlane_b32 s{sWave}, v{vTmp}", vr=[vTmp], sw=[sWave])
    p.valu(f"v_lshlrev_b32 v{vW}, 7, v{vG}", vr=[vG], vw=[vW])
    p.valu(f"v_lshl_add_u32 v{vW}, v{vN}, 1, v{vW}", vr=[vN, vW], vw=[vW])
    p.valu(f"v_lshlrev_b32 v{vB2o}, 12, v{vG}", vr=[vG], vw=[vB2o])
    p.valu(f"v_lshlrev_b32 v{vH0}, 4, v{vLane}", vr=[vLane], vw=[vH0])
    p.valu(f"v_add_u32 v{vH1}, 0x400, v{vH0}", vr=[vH0], vw=[vH1])
    p.valu(f"v_mov_b32 v{vTmp}, 0x80000000", vw=[vTmp])
    p.valu(f"v_cmp_gt_u32 vcc, 36, v{vLane}", vr=[vLane], sw=['vcc'])
    p.valu(f"v_cndmask_b32 v{vH1}, v{vTmp}, v{vH1}, vcc", vr=[vTmp, vH1], vw=[vH1], sr=['vcc'])
    p.valu(f"v_and_b32 v{vMo}, 31, v{vLane}", vr=[vLane], vw=[vMo])
    p.valu(f"v_cmp_gt_u32 vcc, 25, v{vMo}", vr=[vMo], sw=['vcc'])
    p.valu(f"v_lshlrev_b32 v{vMo}, 2, v{vMo}", vr=[vMo], vw=[vMo])
    p.valu(f"v_lshrrev_b32 v{vRow}, 5, v{vLane}", vr=[vLane], vw=[vRow])
    p.valu(f"v_mul_u32_u24 v{vRow}, 100, v{vRow}", vr=[vRow], vw=[vRow])
    p.valu(f"v_add_u32 v{vMo}, v{vMo}, v{vRow}", vr=[vMo, vRow], vw=[vMo])
    p.valu(f"v_cndmask_b32 v{vMo}, v{vTmp}, v{vMo}, vcc", vr=[vTmp, vMo], vw=[vMo], sr=['vcc'])
    p.valu(f"v_lshl_add_u32 v{vOut}, v{vN}, 5, v{vG8}", vr=[vN, vG8], vw=[vOut])
    p.valu(f"v_cmp_gt_u32 vcc, {NB}, v{vN}", vr=[vN], sw=['vcc'])
    p.valu(f"v_cndmask_b32 v{vOut}, v{vTmp}, v{vOut}, vcc", vr=[vTmp, vOut], vw=[vOut], sr=['vcc'])
    p.salu(f"s_mul_i32 s{sB0}, s2, {WPB}", sw=[sB0])
    p.salu(f"s_add_u32 s{sB0}, s{sB0}, s{sWave}", sr=[sWave, sB0], sw=[sB0])
    p.salu(f"s_mul_i32 s{sB0}, s{sB0}, {NB}", sw=[sB0])
    p.salu(f"s_mul_i32 s{sHoff}, s{sB0}, 1600", sw=[sHoff])
    p.salu(f"s_mul_i32 s{sMoff}, s{sB0}, 100", sw=[sMoff])
    p.salu(f"s_lshl_b32 s{sToff}, s{sB0}, 5", sw=[sToff])
    p.salu(f"s_mul_i32 s{sLds}, s{sWave}, {WAVE_LDS}", sr=[sWave], sw=[sLds])
    p.salu(f"s_mov_b32 s{sNL}, 0x{NL2E:08x}", sw=[sNL])
    p.valu(f"v_lshl_add_u32 v{vRow}, v{vN}, 5, v{vG8}", vr=[vN, vG8], vw=[vRow])
    p.valu(f"v_add_u32 v{vRow}, s{sLds}, v{vRow}", vr=[vRow], vw=[vRow], sr=[sLds])
    p.valu(f"v_lshlrev_b32 v{vTr}, 3, v{vLane}", vr=[vLane], vw=[vTr])
    p.valu(f"v_add_u32 v{vTr}, s{sLds}, v{vTr}", vr=[vTr], vw=[vTr], sr=[sLds])
    p.valu(f"v_lshlrev_b32 v{vMk}, 1, v{vN}", vr=[vN], vw=[vMk])
    p.valu(f"v_add_u32 v{vMk}, s{sLds}, v{vMk}", vr=[vMk], vw=[vMk], sr=[sLds])
    p.wait(lgkm=0)
    def srd(d, ptr, nbytes):
        p.salu(f"s_mov_b32 s{d}, s{ptr}", sw=[d])
        p.salu(f"s_and_b32 s{d+1}, s{ptr+1}, 0xffff", sw=[d + 1])
        p.salu(f"s_mov_b32 s{d+2}, {nbytes}", sw=[d + 2])
        p.salu(f"s_mov_b32 s{d+3}, 0x00020000", sw=[d + 3])
    srd(sW1, 10, 2048)
    nvm = 0
    for mi, reg in enumerate((wa, wb, wc, wd)):
        for r in range(4):
            p.vmem(f"buffer_load_ushort v{reg+r}, v{vW}, {S(sW1,4)}, 0 offen offset:{mi*512+r*32}", vr=[vW], vw=[reg + r])
            nvm += 1
    srd(sB1, 12, 32)
    srd(sW2, 14, 32)
    srd(sB2, 16, 4)
    srd(sT, 4, B * 32)
    p.vmem(f"buffer_load_dwordx2 {R(B1raw,2)}, v{vG8}, {S(sB1,4)}, 0 offen", vr=[vG8], vw=rng(B1raw, 2)); nvm += 1
    p.vmem(f"buffer_load_dwordx2 {R(W2base,2)}, v{vG8}, {S(sW2,4)}, 0 offen", vr=[vG8], vw=rng(W2base, 2)); nvm += 1
    p.vmem(f"buffer_load_ushort v{b2raw}, v{vB2o}, {S(sB2,4)}, 0 offen", vr=[vB2o], vw=[b2raw]); nvm += 1
    for b in range(NB):
        p.vmem(f"buffer_load_dwordx2 {R(Traw+2*b,2)}, v{vG8}, {S(sT,4)}, s{sToff} offen offset:{32*b}", vr=[vG8], vw=rng(Traw + 2 * b, 2)); nvm += 1
    srd(sM, 8, B * 100)
    srd(sH, 6, B * 1600)
    srd(sO, 18, B * 32)
    ndma = 0
    for u in range(NB // 2):
        p.salu(f"s_add_u32 m0, s{sLds}, {NB*2048 + u*256}", sw=['m0'])
        p.salu(f"s_add_u32 s{sTmp}, s{sMoff}, {u*200}", sw=[sTmp])
        p.vmem(f"buffer_load_dword v{vMo}, {S(sM,4)}, s{sTmp} offen{POL} lds", vr=[vMo], sr=['m0'])
        ndma += 1
    for b in range(NB):
        p.salu(f"s_add_u32 m0, s{sLds}, {b*2048}", sw=['m0'])
        p.salu(f"s_add_u32 s{sTmp}, s{sHoff}, {b*1600}", sw=[sTmp])
        p.vmem(f"buffer_load_dwordx4 v{vH0}, {S(sH,4)}, s{sTmp} offen{POL} lds", vr=[vH0], sr=['m0'])
        p.salu(f"s_add_u32 m0, s{sLds}, {b*2048+1024}", sw=['m0'])
        p.salu(f"s_nop 0")
        p.vmem(f"buffer_load_dwordx4 v{vH1}, {S(sH,4)}, s{sTmp} offen{POL} lds", vr=[vH1], sr=['m0'])
        ndma += 2
    if diag:
        p.raw("s_memrealtime s[66:67]", 'smem')
    p.wait(vm=ndma + NB)
    if diag:
        p.raw("s_memrealtime s[68:69]", 'smem')
    for reg in (wa, wb, wc, wd):
        for r in range(4):
            p.valu(f"v_lshlrev_b32 v{reg+r}, 16, v{reg+r}", vr=[reg + r], vw=[reg + r])
    for r in range(4):
        p.valu(f"v_add_f32 v{P+r}, v{wa+r}, v{wc+r}", vr=[wa + r, wc + r], vw=[P + r])
        p.valu(f"v_sub_f32 v{wb+r}, v{wb+r}, v{wc+r}", vr=[wb + r, wc + r], vw=[wb + r])
    for r in range(4):
        p.valu(f"v_mul_f32 v{P+r}, s{sNL}, v{P+r}", vr=[P + r], vw=[P + r], sr=[sNL])
        p.valu(f"v_mul_f32 v{Q+r}, s{sNL}, v{wd+r}", vr=[wd + r], vw=[Q + r], sr=[sNL])
        p.valu(f"v_mul_f32 v{wb+r}, s{sNL}, v{wb+r}", vr=[wb + r], vw=[wb + r], sr=[sNL])
    def split(src, hi, lo, u):
        p.valu(f"v_cvt_pk_bf16_f32 v{hi}, v{src}, v{src+1}", vr=[src, src + 1], vw=[hi])
        p.valu(f"v_cvt_pk_bf16_f32 v{hi+1}, v{src+2}, v{src+3}", vr=[src + 2, src + 3], vw=[hi + 1])
        if lo is None:
            return
        p.valu(f"v_lshlrev_b32 v{u}, 16, v{hi}", vr=[hi], vw=[u])
        p.valu(f"v_and_b32 v{u+1}, 0xffff0000, v{hi}", vr=[hi], vw=[u + 1])
        p.valu(f"v_lshlrev_b32 v{u+2}, 16, v{hi+1}", vr=[hi + 1], vw=[u + 2])
        p.valu(f"v_and_b32 v{u+3}, 0xffff0000, v{hi+1}", vr=[hi + 1], vw=[u + 3])
        for r in range(4):
            p.valu(f"v_sub_f32 v{u+r}, v{src+r}, v{u+r}", vr=[src + r, u + r], vw=[u + r])
        p.valu(f"v_cvt_pk_bf16_f32 v{lo}, v{u}, v{u+1}", vr=[u, u + 1], vw=[lo])
        p.valu(f"v_cvt_pk_bf16_f32 v{lo+1}, v{u+2}, v{u+3}", vr=[u + 2, u + 3], vw=[lo + 1])
    split(wb, Wch, Wcl, wc)
    p.valu(f"v_lshlrev_b32 v{B1}, 16, v{B1raw}", vr=[B1raw], vw=[B1])
    p.valu(f"v_and_b32 v{B1+1}, 0xffff0000, v{B1raw}", vr=[B1raw], vw=[B1 + 1])
    p.valu(f"v_lshlrev_b32 v{B1+2}, 16, v{B1raw+1}", vr=[B1raw + 1], vw=[B1 + 2])
    p.valu(f"v_and_b32 v{B1+3}, 0xffff0000, v{B1raw+1}", vr=[B1raw + 1], vw=[B1 + 3])
    for r in range(4):
        p.valu(f"v_mul_f32 v{B1+r}, s{sNL}, v{B1+r}", vr=[B1 + r], vw=[B1 + r], sr=[sNL])
    p.valu(f"v_lshlrev_b32 v{W2base+2}, 16, v{b2raw}", vr=[b2raw], vw=[W2base + 2])
    for r in range(4):
        p.valu(f"v_mov_b32 v{D3+r}, 0", vw=[D3 + r])
    p.wait(vm=ndma)
    for b in range(NB):
        T = Traw + 2 * b
        p.valu(f"v_lshlrev_b32 v{tt}, 16, v{T}", vr=[T], vw=[tt])
        p.valu(f"v_and_b32 v{tt+1}, 0xffff0000, v{T}", vr=[T], vw=[tt + 1])
        p.valu(f"v_lshlrev_b32 v{tt+2}, 16, v{T+1}", vr=[T + 1], vw=[tt + 2])
        p.valu(f"v_and_b32 v{tt+3}, 0xffff0000, v{T+1}", vr=[T + 1], vw=[tt + 3])
        for r in range(4):
            p.valu(f"v_fma_f32 v{mm+r}, v{tt+r}, v{Q+r}, v{P+r}", vr=[tt + r, Q + r, P + r], vw=[mm + r])
        split(mm, Mh(b), Ml(b) if use_lo else None, uu)
        p.mfma("v_mfma_f32_16x16x16_bf16", Cb(b), Wch, 2, T, 2, B1)
        p.mfma("v_mfma_f32_16x16x16_bf16", Cb(b), Wcl, 2, T, 2, Cb(b))
        m = 0x0001000100010001 << b
        p.salu(f"s_mov_b32 s{sMask}, 0x{m & 0xffffffff:08x}", sw=[sMask])
        p.salu(f"s_mov_b32 s{sMask+1}, 0x{m >> 32:08x}", sw=[sMask + 1])
        for r in range(3):
            p.valu(f"v_cndmask_b32 v{W2B(b)+r}, 0, v{W2base+r}, {S(sMask,2)}", vr=[W2base + r], vw=[W2B(b) + r], sr=[sMask, sMask + 1])
        p.valu(f"v_mov_b32 v{W2B(b)+3}, 0", vw=[W2B(b) + 3])
    for q in range(4):
        p.valu(f"v_mov_b32 v{A2(q)+2}, 0", vw=[A2(q) + 2])
        p.valu(f"v_mov_b32 v{A2(q)+3}, 0", vw=[A2(q) + 3])
    for b in range(NB):
        p.comment(f"batch {b}")
        p.wait(vm=2 * (NB - 1 - b))
        if diag and b == 0:
            p.raw("s_memrealtime s[70:71]", 'smem')
            p.wait(lgkm=0)
        if diag and b == NB - 1:
            p.raw("s_memrealtime s[72:73]", 'smem')
            p.wait(lgkm=0)
        for q in range(4):
            p.ds(f"ds_read_b64 {R(Rr(q),2)}, v{vRow} offset:{b*2048+q*512}", vr=[vRow], vw=rng(Rr(q), 2))
        for q in range(4):
            p.ds(f"ds_read_u16_d16_hi v{A2(q)+2}, v{vMk} offset:{NB*2048+b*128+q*32}", vr=[vMk, A2(q) + 2], vw=[A2(q) + 2])
        for q in range(4):
            p.ds(f"ds_read_b64_tr_b16 {R(X(q),2)}, v{vTr} offset:{b*2048+q*512}", vr=[vTr], vw=rng(X(q), 2))
        for q in range(4):
            p.wait(lgkm=11 - q)
            p.mfma("v_mfma_f32_16x16x16_bf16", D1(q), Mh(b), 2, Rr(q), 2, Cb(b))
        if use_lo:
            for q in range(4):
                p.mfma("v_mfma_f32_16x16x16_bf16", D1(q), Ml(b), 2, Rr(q), 2, D1(q))
        for q in range(4):
            for r in range(4):
                p.trans("v_exp_f32", D1(q) + r, D1(q) + r)
        for q in range(4):
            for r in range(4):
                p.valu(f"v_add_f32 v{D1(q)+r}, 1.0, v{D1(q)+r}", vr=[D1(q) + r], vw=[D1(q) + r])
        for q in range(4):
            for r in range(4):
                p.trans("v_rcp_f32", D1(q) + r, D1(q) + r)
        p.wait(lgkm=4)
        for q in range(4):
            for r in range(4):
                p.valu(f"v_mul_f32 v{D1(q)+r}, v{A2(q)+2}, v{D1(q)+r}", vr=[D1(q) + r, A2(q) + 2], vw=[D1(q) + r])
            p.valu(f"v_cvt_pk_bf16_f32 v{A2(q)}, v{D1(q)}, v{D1(q)+1}", vr=[D1(q), D1(q) + 1], vw=[A2(q)])
            p.valu(f"v_cvt_pk_bf16_f32 v{A2(q)+1}, v{D1(q)+2}, v{D1(q)+3}", vr=[D1(q) + 2, D1(q) + 3], vw=[A2(q) + 1])
        for q in range(4):
            p.mfma("v_mfma_f32_16x16x32_bf16", D1(q), A2(q), 4, W2B(b), 4, None)
        for q in range(4):
            p.valu(f"v_cvt_pk_bf16_f32 v{Sr(q)}, v{D1(q)}, v{D1(q)+1}", vr=[D1(q), D1(q) + 1], vw=[Sr(q)])
            p.valu(f"v_cvt_pk_bf16_f32 v{Sr(q)+1}, v{D1(q)+2}, v{D1(q)+3}", vr=[D1(q) + 2, D1(q) + 3], vw=[Sr(q) + 1])
        p.wait(lgkm=0)
        for q in (0, 2):
            p.mfma("v_mfma_f32_16x16x32_bf16", D3, X(q), 4, Sr(q), 4, D3)
    p.valu(f"v_cvt_pk_bf16_f32 v{D1(0)}, v{D3}, v{D3+1}", vr=[D3, D3 + 1], vw=[D1(0)])
    p.valu(f"v_cvt_pk_bf16_f32 v{D1(0)+1}, v{D3+2}, v{D3+3}", vr=[D3 + 2, D3 + 3], vw=[D1(0) + 1])
    p.vmem(f"buffer_store_dwordx2 {R(D1(0),2)}, v{vOut}, {S(sO,4)}, s{sToff} offen", vr=[vOut, D1(0), D1(0) + 1])
    if diag:
        p.raw("s_memrealtime s[74:75]", 'smem')
        p.wait(lgkm=0)
        p.salu("s_mov_b32 s80, s76"); p.salu("s_and_b32 s81, s77, 0xffff"); p.salu("s_mov_b32 s82, 0x1000000"); p.salu("s_mov_b32 s83, 0x20000")
        p.raw("s_getreg_b32 s78, hwreg(HW_REG_XCC_ID)", 'salu')
        p.raw("s_getreg_b32 s79, hwreg(HW_REG_HW_ID)", 'salu')
        for i in range(8):
            p.valu(f"v_mov_b32 v{20+i}, s{64+2*i if i < 6 else 72+i}", vw=[20+i])
        p.salu(f"s_lshl_b32 s84, s{sB0}, {6}"); p.salu(f"s_lshr_b32 s84, s84, {NB.bit_length()-1}")
        p.valu("v_mov_b32 v30, 0", vw=[30])
        p.raw("s_mov_b64 exec, 1", 'salu')
        p.vmem("buffer_store_dwordx4 v[20:23], v30, s[80:83], s84 offen", vr=[20,21,22,23,30])
        p.vmem("buffer_store_dwordx4 v[24:27], v30, s[80:83], s84 offen offset:16", vr=[24,25,26,27,30])
    p.label("L_end")
    p.raw("s_endpgm")
    p.fix_hazards()
    acc = (nvgpr + 3) // 4 * 4
    hdr = f"""; DIN local-activation kernel (generated by gen_v1.py) NB={NB} WPB={WPB}
; @launch grid=({NWG},1,1) block=({64*WPB},1,1) lds={LDS}
.amdgcn_target "amdgcn-amd-amdhsa--gfx950"
.text
.globl {NAME}_kernel
.p2align 8
.type {NAME}_kernel,@function
{NAME}_kernel:
"""
    ftr = f"""
.section .rodata,"a"
.p2align 6
.amdhsa_kernel {NAME}_kernel
  .amdhsa_next_free_vgpr {nvgpr}
  .amdhsa_next_free_sgpr {96 if diag else 64}
  .amdhsa_accum_offset {acc}
  .amdhsa_group_segment_fixed_size 0
  .amdhsa_kernarg_size 80
  .amdhsa_user_sgpr_count 2
  .amdhsa_user_sgpr_kernarg_segment_ptr 1
  .amdhsa_system_sgpr_workgroup_id_x 1
.end_amdhsa_kernel
"""
    return hdr + p.text() + "\n" + ftr

if __name__ == "__main__":
    out = sys.argv[1] if len(sys.argv) > 1 else f"cdna_kernels/{NAME}.s"
    kw = {}
    for a in sys.argv[2:]:
        k, v = a.split('=')
        kw[k] = int(v)
    open(out, "w").write(gen(**kw))
    print("wrote", out)
```

```python
import sys, struct
from asmlib import *

NAME = "standalone__sequential_behavior_din__recsys"
B, L, D = 16384, 50, 16

class Pool:
    def __init__(self, start, limit):
        self.free_ = set(range(start, limit))
        self.maxused = start
    def alloc(self, n=1, align=None):
        if align is None:
            align = 2 if n >= 2 else 1
        r = min(self.free_)
        cand = sorted(self.free_)
        for r in cand:
            if r % align == 0 and all((r + i) in self.free_ for i in range(n)):
                for i in range(n):
                    self.free_.remove(r + i)
                self.maxused = max(self.maxused, r + n)
                return r
        raise RuntimeError("out of vgprs")
    def free(self, r, n=1):
        for i in range(n):
            assert (r + i) not in self.free_
            self.free_.add(r + i)

def bf16_bits(x):
    u = struct.unpack('<I', struct.pack('<f', x))[0]
    u = (u + 0x7fff + ((u >> 16) & 1)) >> 16
    return u & 0xffff
def bf16_val(b):
    return struct.unpack('<f', struct.pack('<I', b << 16))[0]

def gen(NB=4, WPB=4, use_lo=1, diag=0, pol=0, prio=1):
    POL = ['', ' nt', ' sc1', ' sc0 sc1', ' sc0 sc1 nt'][pol]
    NWG = B // (NB * WPB)
    NDMA = (NB * 1600 + 1023) // 1024
    HREG = NDMA * 1024
    assert HREG - NB * 1600 >= 448
    SLOTB = HREG
    WAVE_LDS = HREG + NB * 512
    LDS = WAVE_LDS * WPB
    p = Prog()
    C = -1.4426950408889634
    NL2E = struct.unpack('<I', struct.pack('<f', C))[0]
    ch = bf16_bits(C); cl = bf16_bits(C - bf16_val(ch))
    nch = ch ^ 0x8000; ncl = cl ^ 0x8000

    sH, sM, sT, sO, sW1, sB1, sW2, sB2 = 20, 24, 28, 32, 36, 40, 44, 48
    sWave, sB0, sHoff, sMoff, sLds, sTmp, sToff, sNL = 52, 53, 54, 55, 56, 57, 58, 59
    sMask = 60
    def sAct(b): return 62 + 2 * b
    def sCnt(b): return 70 + b
    sD = 76

    P = Pool(4, 128)
    vLane, vN, vG = 1, 2, 3
    V = p.valu

    p.salu(f"s_cmp_ge_u32 s2, {NWG}")
    p.raw("s_cbranch_scc1 L_end", 'branch')
    if prio:
        p.raw("s_setprio 3", 'salu')
    if diag:
        p.raw(f"s_memrealtime s[{sD}:{sD+1}]", 'smem')
        p.raw("s_load_dwordx2 s[74:75], s[0:1], 72", 'smem')
    p.raw("s_load_dwordx16 s[4:19], s[0:1], 0", 'smem')
    vTmp = P.alloc(); vG8 = P.alloc(); vBig = P.alloc()
    V(f"v_and_b32 v{vLane}, 63, v0", vr=[0], vw=[vLane])
    V(f"v_and_b32 v{vN}, 15, v0", vr=[0], vw=[vN])
    V(f"v_bfe_u32 v{vG}, v0, 4, 2", vr=[0], vw=[vG])
    V(f"v_lshrrev_b32 v{vTmp}, 6, v0", vr=[0], vw=[vTmp])
    V(f"v_lshlrev_b32 v{vG8}, 3, v{vG}", vr=[vG], vw=[vG8])
    V(f"v_readfirstlane_b32 s{sWave}, v{vTmp}", vr=[vTmp], sw=[sWave])
    V(f"v_mov_b32 v{vBig}, 0x80000000", vw=[vBig])
    vMo = P.alloc()
    V(f"v_lshlrev_b32 v{vMo}, 1, v{vLane}", vr=[vLane], vw=[vMo])
    V(f"v_cmp_gt_u32 vcc, 50, v{vLane}", vr=[vLane], sw=['vcc'])
    mi = [P.alloc(2) for b in range(NB)]
    for b in range(NB):
        V(f"v_mov_b32 v{mi[b]}, 0", vw=[mi[b]])
    V(f"v_cndmask_b32 v{vMo}, v{vBig}, v{vMo}, vcc", vr=[vBig, vMo], vw=[vMo], sr=['vcc'])
    vNG = P.alloc()
    V(f"v_lshl_add_u32 v{vNG}, v{vN}, 5, v{vG8}", vr=[vN, vG8], vw=[vNG])
    vB2o = P.alloc()
    V(f"v_lshlrev_b32 v{vB2o}, 12, v{vG}", vr=[vG], vw=[vB2o])
    vH0 = P.alloc(); vH1 = P.alloc()
    V(f"v_lshlrev_b32 v{vH0}, 4, v{vLane}", vr=[vLane], vw=[vH0])
    lastl = (NB * 1600 - (NDMA - 1) * 1024) // 16
    V(f"v_cmp_gt_u32 vcc, {lastl}, v{vLane}", vr=[vLane], sw=['vcc'])
    p.salu(f"s_mul_i32 s{sB0}, s2, {WPB}", sw=[sB0])
    p.salu(f"s_add_u32 s{sB0}, s{sB0}, s{sWave}", sr=[sWave, sB0], sw=[sB0])
    V(f"v_cndmask_b32 v{vH1}, v{vBig}, v{vH0}, vcc", vr=[vBig, vH0], vw=[vH1], sr=['vcc'])
    p.salu(f"s_mul_i32 s{sB0}, s{sB0}, {NB}", sw=[sB0])
    p.salu(f"s_mul_i32 s{sHoff}, s{sB0}, 1600", sw=[sHoff])
    p.salu(f"s_mul_i32 s{sMoff}, s{sB0}, 100", sw=[sMoff])
    p.salu(f"s_lshl_b32 s{sToff}, s{sB0}, 5", sw=[sToff])
    p.salu(f"s_mul_i32 s{sLds}, s{sWave}, {WAVE_LDS}", sr=[sWave], sw=[sLds])
    p.salu(f"s_mov_b32 s{sNL}, 0x{NL2E:08x}", sw=[sNL])
    p.wait(lgkm=0)
    def srd(d, ptr, nbytes):
        p.salu(f"s_mov_b32 s{d}, s{ptr}", sw=[d])
        p.salu(f"s_and_b32 s{d+1}, s{ptr+1}, 0xffff", sw=[d + 1])
        p.salu(f"s_mov_b32 s{d+2}, {nbytes}", sw=[d + 2])
        p.salu(f"s_mov_b32 s{d+3}, 0x00020000", sw=[d + 3])
    srd(sM, 8, B * 100)
    for b in range(NB):
        p.vmem(f"buffer_load_short_d16_hi v{mi[b]}, v{vMo}, {S(sM,4)}, s{sMoff} offen offset:{100*b}", vr=[vMo, mi[b]], vw=[mi[b]])
    srd(sT, 4, B * 32)
    Traw = P.alloc(2 * NB)
    for b in range(NB):
        p.vmem(f"buffer_load_dwordx2 {R(Traw+2*b,2)}, v{vG8}, {S(sT,4)}, s{sToff} offen offset:{32*b}", vr=[vG8], vw=rng(Traw + 2 * b, 2))
    srd(sW1, 10, 2048)
    Wr = P.alloc(8)
    for i, mat in enumerate((0, 2, 1, 3)):
        p.vmem(f"buffer_load_dwordx2 {R(Wr+2*i,2)}, v{vNG}, {S(sW1,4)}, 0 offen offset:{mat*512}", vr=[vNG], vw=rng(Wr + 2 * i, 2))
    srd(sB1, 12, 32)
    srd(sW2, 14, 32)
    srd(sB2, 16, 4)
    B1raw = P.alloc(2); W2base = P.alloc(4); b2raw = P.alloc()
    p.vmem(f"buffer_load_dwordx2 {R(B1raw,2)}, v{vG8}, {S(sB1,4)}, 0 offen", vr=[vG8], vw=rng(B1raw, 2))
    p.vmem(f"buffer_load_dwordx2 {R(W2base,2)}, v{vG8}, {S(sW2,4)}, 0 offen", vr=[vG8], vw=rng(W2base, 2))
    p.vmem(f"buffer_load_ushort v{b2raw}, v{vB2o}, {S(sB2,4)}, 0 offen", vr=[vB2o], vw=[b2raw])
    srd(sH, 6, B * 1600)
    for i in range(NDMA):
        p.salu(f"s_add_u32 m0, s{sLds}, {i*1024}", sw=['m0'])
        p.salu(f"s_add_u32 s{sTmp}, s{sHoff}, {i*1024}", sw=[sTmp])
        vo = vH1 if i == NDMA - 1 else vH0
        p.vmem(f"buffer_load_dwordx4 v{vo}, {S(sH,4)}, s{sTmp} offen{POL} lds", vr=[vo], sr=['m0'])
    if diag:
        p.raw(f"s_memrealtime s[{sD+2}:{sD+3}]", 'smem')
    if prio:
        p.raw("s_setprio 0", 'salu')
    srd(sO, 18, B * 32)
    P.free(vH0); P.free(vH1); P.free(vMo); P.free(vB2o)
    vTrA = P.alloc(); vSlotA = P.alloc(); vRdA = P.alloc(); vDefA = P.alloc(); vOut = P.alloc()
    vRowA = [P.alloc() for b in range(NB)]
    vDef = P.alloc(2)
    V(f"v_lshlrev_b32 v{vTrA}, 3, v{vLane}", vr=[vLane], vw=[vTrA])
    V(f"v_add_u32 v{vTrA}, s{sLds}, v{vTrA}", vr=[vTrA], vw=[vTrA], sr=[sLds])
    V(f"v_add_u32 v{vDefA}, {SLOTB}, v{vTrA}", vr=[vTrA], vw=[vDefA])
    V(f"v_lshlrev_b32 v{vSlotA}, 3, v{vN}", vr=[vN], vw=[vSlotA])
    V(f"v_add_u32 v{vSlotA}, s{sLds}, v{vSlotA}", vr=[vSlotA], vw=[vSlotA], sr=[sLds])
    V(f"v_lshlrev_b32 v{vRdA}, 5, v{vLane}", vr=[vLane], vw=[vRdA])
    V(f"v_add_u32 v{vRdA}, s{sLds}, v{vRdA}", vr=[vRdA], vw=[vRdA], sr=[sLds])
    V(f"v_add_u32 v{vRowA[0]}, s{sLds}, v{vNG}", vr=[vNG], vw=[vRowA[0]], sr=[sLds])
    for b in range(1, NB):
        V(f"v_add_u32 v{vRowA[b]}, {b*1600}, v{vRowA[0]}", vr=[vRowA[0]], vw=[vRowA[b]])
    V(f"v_mov_b32 v{vDef}, 0", vw=[vDef])
    V(f"v_mov_b32 v{vDef+1}, 0x7f000000", vw=[vDef + 1])
    V(f"v_cmp_gt_u32 vcc, {NB}, v{vN}", vr=[vN], sw=['vcc'])
    for b in range(NB):
        p.ds(f"ds_write_b64 v{vDefA}, {R(vDef,2)} offset:{b*512}", vr=[vDefA, vDef, vDef + 1])
    V(f"v_cndmask_b32 v{vOut}, v{vBig}, v{vNG}, vcc", vr=[vBig, vNG], vw=[vOut], sr=['vcc'])
    U = P.alloc(2)
    cIh = P.alloc(6); cIl = P.alloc(6)
    def lanemask(t):
        m = 0
        for lane in range(64):
            if (lane & 15) - 4 * (lane >> 4) == t:
                m |= 1 << lane
        return m
    vOne = vTmp
    V(f"v_mov_b32 v{vOne}, 0x10000", vw=[vOne])
    for h in range(2):
        m0_, m1_ = lanemask(2 * h), lanemask(2 * h + 1)
        p.salu(f"s_mov_b32 s{sMask}, 0x{m0_ & 0xffffffff:08x}", sw=[sMask])
        p.salu(f"s_mov_b32 s{sMask+1}, 0x{m0_ >> 32:08x}", sw=[sMask + 1])
        V(f"v_cndmask_b32 v{U+h}, 0, 1, {S(sMask,2)}", vw=[U + h], sr=[sMask, sMask + 1])
        p.salu(f"s_mov_b32 s{sMask}, 0x{m1_ & 0xffffffff:08x}", sw=[sMask])
        p.salu(f"s_mov_b32 s{sMask+1}, 0x{m1_ >> 32:08x}", sw=[sMask + 1])
        V(f"v_cndmask_b32 v{U+h}, v{U+h}, v{vOne}, {S(sMask,2)}", vr=[U + h, vOne], vw=[U + h], sr=[sMask, sMask + 1])
    for base_, neg, pos in ((cIh, nch, ch), (cIl, ncl, cl)):
        for k, val in enumerate((neg, pos, pos)):
            for h in range(2):
                V(f"v_mul_u32_u24 v{base_+2*k+h}, 0x{val:x}, v{U+h}", vr=[U + h], vw=[base_ + 2 * k + h])
    P.free(U, 2)
    nsmall_after_mask = NB + 4 + 3
    p.wait(vm=NDMA + nsmall_after_mask)
    addrH = [P.alloc() for b in range(NB)]
    rk = P.alloc(); aS = P.alloc()
    for b in range(NB):
        m = mi[b]
        V(f"v_cmp_neq_f32 {S(sAct(b),2)}, 0, v{m}", vr=[m], sw=[sAct(b), sAct(b) + 1])
        p.trans("v_rcp_f32", m + 1, m)
        V(f"v_mbcnt_lo_u32_b32 v{rk}, s{sAct(b)}, 0", vw=[rk], sr=[sAct(b)])
        V(f"v_mbcnt_hi_u32_b32 v{rk}, s{sAct(b)+1}, v{rk}", vr=[rk], vw=[rk], sr=[sAct(b) + 1])
        p.salu(f"s_bcnt1_i32_b64 s{sCnt(b)}, {S(sAct(b),2)}", sr=[sAct(b), sAct(b) + 1], sw=[sCnt(b)])
        p.salu(f"s_add_u32 s{sTmp}, s{sLds}, {SLOTB + b*512}", sw=[sTmp])
        V(f"v_lshl_add_u32 v{aS}, v{rk}, 3, s{sTmp}", vr=[rk], vw=[aS], sr=[sTmp])
        p.salu(f"s_add_u32 s{sTmp}, s{sLds}, {b*1600}", sw=[sTmp])
        V(f"v_lshl_add_u32 v{addrH[b]}, v{rk}, 5, s{sTmp}", vr=[rk], vw=[addrH[b]], sr=[sTmp])
        p.salu(f"s_mov_b64 exec, {S(sAct(b),2)}", sr=[sAct(b), sAct(b) + 1], sw=['exec'])
        p.ds(f"ds_write_b64 v{aS}, {R(m,2)}", vr=[aS, m, m + 1])
        p.salu("s_mov_b64 exec, -1", sw=['exec'])
    p.wait(vm=NDMA)
    Pm = P.alloc(4); Qm = P.alloc(4); Rm = P.alloc(4)
    M32 = "v_mfma_f32_16x16x32_bf16"; M16 = "v_mfma_f32_16x16x16_bf16"
    p.mfma(M32, Pm, Wr, 4, cIh + 2, 4, None)
    p.mfma(M32, Rm, Wr + 2, 4, cIh, 4, None)
    p.mfma(M16, Qm, Wr + 6, 2, cIh + 2, 2, None)
    p.mfma(M32, Pm, Wr, 4, cIl + 2, 4, Pm)
    p.mfma(M32, Rm, Wr + 2, 4, cIl, 4, Rm)
    p.mfma(M16, Qm, Wr + 6, 2, cIl + 2, 2, Qm)
    B1 = P.alloc(4)
    V(f"v_lshlrev_b32 v{B1}, 16, v{B1raw}", vr=[B1raw], vw=[B1])
    V(f"v_and_b32 v{B1+1}, 0xffff0000, v{B1raw}", vr=[B1raw], vw=[B1 + 1])
    V(f"v_lshlrev_b32 v{B1+2}, 16, v{B1raw+1}", vr=[B1raw + 1], vw=[B1 + 2])
    V(f"v_and_b32 v{B1+3}, 0xffff0000, v{B1raw+1}", vr=[B1raw + 1], vw=[B1 + 3])
    for r in range(4):
        V(f"v_mul_f32 v{B1+r}, s{sNL}, v{B1+r}", vr=[B1 + r], vw=[B1 + r], sr=[sNL])
    V(f"v_lshlrev_b32 v{W2base+2}, 16, v{b2raw}", vr=[b2raw], vw=[W2base + 2])
    D3 = P.alloc(4)
    for r in range(4):
        V(f"v_mov_b32 v{D3+r}, 0", vw=[D3 + r])
    for b in range(NB):
        P.free(mi[b], 2)
    P.free(rk); P.free(aS)
    uu = P.alloc(4)
    def split(src, hi, lo, u):
        V(f"v_cvt_pk_bf16_f32 v{hi}, v{src}, v{src+1}", vr=[src, src + 1], vw=[hi])
        V(f"v_cvt_pk_bf16_f32 v{hi+1}, v{src+2}, v{src+3}", vr=[src + 2, src + 3], vw=[hi + 1])
        if lo is None:
            return
        V(f"v_lshlrev_b32 v{u}, 16, v{hi}", vr=[hi], vw=[u])
        V(f"v_and_b32 v{u+1}, 0xffff0000, v{hi}", vr=[hi], vw=[u + 1])
        V(f"v_lshlrev_b32 v{u+2}, 16, v{hi+1}", vr=[hi + 1], vw=[u + 2])
        V(f"v_and_b32 v{u+3}, 0xffff0000, v{hi+1}", vr=[hi + 1], vw=[u + 3])
        for r in range(4):
            V(f"v_sub_f32 v{u+r}, v{src+r}, v{u+r}", vr=[src + r, u + r], vw=[u + r])
        V(f"v_cvt_pk_bf16_f32 v{lo}, v{u}, v{u+1}", vr=[u, u + 1], vw=[lo])
        V(f"v_cvt_pk_bf16_f32 v{lo+1}, v{u+2}, v{u+3}", vr=[u + 2, u + 3], vw=[lo + 1])
    Rh = P.alloc(4)
    split(Rm, Rh, Rh + 2, uu)
    P.free(Wr, 8); P.free(cIh, 6); P.free(cIl, 6); P.free(Rm, 4); P.free(B1raw, 2); P.free(b2raw)
    MM = [P.alloc(4) for b in range(NB)]
    Cb = [P.alloc(4) for b in range(NB)]
    W2B = [P.alloc(4) for b in range(NB)]
    tt = P.alloc(4); mm = P.alloc(4)
    for b in range(NB):
        T = Traw + 2 * b
        V(f"v_lshlrev_b32 v{tt}, 16, v{T}", vr=[T], vw=[tt])
        V(f"v_and_b32 v{tt+1}, 0xffff0000, v{T}", vr=[T], vw=[tt + 1])
        V(f"v_lshlrev_b32 v{tt+2}, 16, v{T+1}", vr=[T + 1], vw=[tt + 2])
        V(f"v_and_b32 v{tt+3}, 0xffff0000, v{T+1}", vr=[T + 1], vw=[tt + 3])
        for r in range(4):
            V(f"v_fma_f32 v{mm+r}, v{tt+r}, v{Qm+r}, v{Pm+r}", vr=[tt + r, Qm + r, Pm + r], vw=[mm + r])
        split(mm, MM[b], MM[b] + 2 if use_lo else None, uu)
        p.mfma(M16, Cb[b], Rh, 2, T, 2, B1)
        p.mfma(M16, Cb[b], Rh + 2, 2, T, 2, Cb[b])
        m = 0x0001000100010001 << b
        p.salu(f"s_mov_b32 s{sMask}, 0x{m & 0xffffffff:08x}", sw=[sMask])
        p.salu(f"s_mov_b32 s{sMask+1}, 0x{m >> 32:08x}", sw=[sMask + 1])
        for r in range(3):
            V(f"v_cndmask_b32 v{W2B[b]+r}, 0, v{W2base+r}, {S(sMask,2)}", vr=[W2base + r], vw=[W2B[b] + r], sr=[sMask, sMask + 1])
        V(f"v_mov_b32 v{W2B[b]+3}, 0", vw=[W2B[b] + 3])
    P.free(tt, 4); P.free(mm, 4); P.free(uu, 4); P.free(Rh, 4); P.free(B1, 4); P.free(Pm, 4); P.free(Qm, 4)
    P.free(W2base, 4); P.free(Traw, 2 * NB); P.free(vDef, 2); P.free(vDefA); P.free(vNG); P.free(vG8); P.free(vTmp); P.free(vBig)
    CB = P.alloc(8)
    RW = [P.alloc(4) for t in range(2)]
    X = P.alloc(4)
    A2 = [P.alloc(4) for t in range(2)]
    IV = [P.alloc() for t in range(2)]
    D1 = [P.alloc(4) for t in range(2)]
    SS = P.alloc(4)
    for t in range(2):
        V(f"v_mov_b32 v{A2[t]+3}, 0", vw=[A2[t] + 3])

    def tiles(b, t0):
        for k in range(2):
            t = t0 + k
            if use_lo:
                p.ds(f"ds_read2_b64 {R(RW[k],4)}, v{vRowA[b]} offset0:{t*64} offset1:{t*64}", vr=[vRowA[b]], vw=rng(RW[k], 4))
            else:
                p.ds(f"ds_read_b64 {R(RW[k],2)}, v{vRowA[b]} offset:{t*512}", vr=[vRowA[b]], vw=rng(RW[k], 2))
        for k in range(2):
            t = t0 + k
            p.ds(f"ds_read_b32 v{IV[k]}, v{vSlotA} offset:{SLOTB+b*512+t*128+4}", vr=[vSlotA], vw=[IV[k]])
        for k in range(2):
            t = t0 + k
            p.ds(f"ds_read_b32 v{A2[k]+2}, v{vSlotA} offset:{SLOTB+b*512+t*128}", vr=[vSlotA], vw=[A2[k] + 2])
        for k in range(2):
            t = t0 + k
            p.ds(f"ds_read_b64_tr_b16 {R(X+2*k,2)}, v{vTrA} offset:{b*1600+t*512}", vr=[vTrA], vw=rng(X + 2 * k, 2))
        for k in range(2):
            p.wait(lgkm=7 - k)
            if use_lo:
                p.mfma(M32, D1[k], MM[b], 4, RW[k], 4, Cb[b])
            else:
                p.mfma(M16, D1[k], MM[b], 2, RW[k], 2, Cb[b])
        for k in range(2):
            for r in range(4):
                p.trans("v_exp_f32", D1[k] + r, D1[k] + r)
        p.wait(lgkm=4)
        for k in range(2):
            for r in range(4):
                V(f"v_fma_f32 v{D1[k]+r}, v{D1[k]+r}, v{IV[k]}, v{IV[k]}", vr=[D1[k] + r, IV[k]], vw=[D1[k] + r])
        for k in range(2):
            for r in range(4):
                p.trans("v_rcp_f32", D1[k] + r, D1[k] + r)
        for k in range(2):
            V(f"v_cvt_pk_bf16_f32 v{A2[k]}, v{D1[k]}, v{D1[k]+1}", vr=[D1[k], D1[k] + 1], vw=[A2[k]])
            V(f"v_cvt_pk_bf16_f32 v{A2[k]+1}, v{D1[k]+2}, v{D1[k]+3}", vr=[D1[k] + 2, D1[k] + 3], vw=[A2[k] + 1])
        p.wait(lgkm=2)
        for k in range(2):
            p.mfma(M32, D1[k], A2[k], 4, W2B[b], 4, None)
        for k in range(2):
            V(f"v_cvt_pk_bf16_f32 v{SS+2*k}, v{D1[k]}, v{D1[k]+1}", vr=[D1[k], D1[k] + 1], vw=[SS + 2 * k])
            V(f"v_cvt_pk_bf16_f32 v{SS+2*k+1}, v{D1[k]+2}, v{D1[k]+3}", vr=[D1[k] + 2, D1[k] + 3], vw=[SS + 2 * k + 1])
        p.wait(lgkm=0)
        p.mfma(M32, D3, X, 4, SS, 4, D3)

    for b in range(NB):
        p.comment(f"batch {b}")
        need = ((b + 1) * 1600 + 1023) // 1024
        if b == NB - 1:
            need = NDMA
        p.wait(vm=NDMA - need)
        if diag and b == 0:
            p.raw(f"s_memrealtime s[{sD+6}:{sD+7}]", 'smem'); p.wait(lgkm=0)
        if diag and b == NB - 1:
            p.raw(f"s_memrealtime s[{sD+8}:{sD+9}]", 'smem'); p.wait(lgkm=0)
        p.ds(f"ds_read_b128 {R(CB,4)}, v{vRdA} offset:{b*1600}", vr=[vRdA], vw=rng(CB, 4))
        p.ds(f"ds_read_b128 {R(CB+4,4)}, v{vRdA} offset:{b*1600+16}", vr=[vRdA], vw=rng(CB + 4, 4))
        p.salu(f"s_mov_b64 exec, {S(sAct(b),2)}", sr=[sAct(b), sAct(b) + 1], sw=['exec'])
        p.wait(lgkm=0)
        p.ds(f"ds_write_b128 v{addrH[b]}, {R(CB,4)}", vr=[addrH[b]] + rng(CB, 4))
        p.ds(f"ds_write_b128 v{addrH[b]}, {R(CB+4,4)} offset:16", vr=[addrH[b]] + rng(CB + 4, 4))
        p.salu("s_mov_b64 exec, -1", sw=['exec'])
        p.wait(lgkm=0)
        tiles(b, 0)
        p.salu(f"s_cmp_gt_u32 s{sCnt(b)}, 32", sr=[sCnt(b)])
        p.raw(f"s_cbranch_scc1 L_extra{b}", 'branch')
        p.label(f"L_back{b}")
    V(f"v_cvt_pk_bf16_f32 v{SS}, v{D3}, v{D3+1}", vr=[D3, D3 + 1], vw=[SS])
    V(f"v_cvt_pk_bf16_f32 v{SS+1}, v{D3+2}, v{D3+3}", vr=[D3 + 2, D3 + 3], vw=[SS + 1])
    p.vmem(f"buffer_store_dwordx2 {R(SS,2)}, v{vOut}, {S(sO,4)}, s{sToff} offen", vr=[vOut, SS, SS + 1])
    if diag:
        p.raw(f"s_memrealtime s[{sD+10}:{sD+11}]", 'smem')
        p.wait(lgkm=0)
        p.salu("s_mov_b32 s92, s74"); p.salu("s_and_b32 s93, s75, 0xffff"); p.salu("s_mov_b32 s94, 0x1000000"); p.salu("s_mov_b32 s95, 0x20000")
        p.raw("s_getreg_b32 s88, hwreg(HW_REG_XCC_ID)", 'salu')
        srcs = [sD, sD + 2, sD + 2, sD + 6, sD + 8, sD + 10, 88, 88]
        for i in range(8):
            V(f"v_mov_b32 v{CB+i}, s{srcs[i]}", vw=[CB + i])
        p.salu(f"s_lshl_b32 s89, s{sB0}, 6"); p.salu(f"s_lshr_b32 s89, s89, {NB.bit_length()-1}")
        V(f"v_mov_b32 v{X}, 0", vw=[X])
        p.raw("s_mov_b64 exec, 1", 'salu')
        p.vmem(f"buffer_store_dwordx4 {R(CB,4)}, v{X}, s[92:95], s89 offen", vr=rng(CB, 4) + [X])
        p.vmem(f"buffer_store_dwordx4 {R(CB+4,4)}, v{X}, s[92:95], s89 offen offset:16", vr=rng(CB + 4, 4) + [X])
    p.label("L_end")
    p.raw("s_endpgm")
    for b in range(NB):
        p.label(f"L_extra{b}")
        p.raw("s_nop 15", 'other')
        p.wait(vm=0)
        tiles(b, 2)
        p.raw("s_nop 15", 'other')
        p.raw(f"s_branch L_back{b}", 'branch')
    p.fix_hazards()
    nvgpr = P.maxused
    acc = (nvgpr + 3) // 4 * 4
    hdr = f"""; DIN local-activation kernel (generated by gen_v3.py) NB={NB} WPB={WPB}
; @launch grid=({NWG},1,1) block=({64*WPB},1,1) lds={LDS}
.amdgcn_target "amdgcn-amd-amdhsa--gfx950"
.text
.globl {NAME}_kernel
.p2align 8
.type {NAME}_kernel,@function
{NAME}_kernel:
"""
    ftr = f"""
.section .rodata,"a"
.p2align 6
.amdhsa_kernel {NAME}_kernel
  .amdhsa_next_free_vgpr {nvgpr}
  .amdhsa_next_free_sgpr {96 if diag else 76}
  .amdhsa_accum_offset {acc}
  .amdhsa_group_segment_fixed_size 0
  .amdhsa_kernarg_size 80
  .amdhsa_user_sgpr_count 2
  .amdhsa_user_sgpr_kernarg_segment_ptr 1
  .amdhsa_system_sgpr_workgroup_id_x 1
.end_amdhsa_kernel
"""
    return hdr + p.text() + "\n" + ftr

if __name__ == "__main__":
    out = sys.argv[1] if len(sys.argv) > 1 else f"cdna_kernels/{NAME}.s"
    kw = {}
    for a in sys.argv[2:]:
        k, v = a.split('=')
        kw[k] = int(v)
    open(out, "w").write(gen(**kw))
    print("wrote", out)
```
